```python
import torch

def _softmax(x, axis=-1):
    return torch.softmax(x, dim=axis)
def _gelu(x):
    return torch.nn.functional.gelu(x, approximate="tanh")
def _silu(x):
    return torch.nn.functional.silu(x)
def _sigmoid(x):
    return torch.sigmoid(x)
def _layernorm(x, axis=-1, eps=1e-5):
    m = x.mean(dim=axis, keepdim=True)
    v = x.var(dim=axis, keepdim=True, unbiased=False)
    return (x - m) / torch.sqrt(v + eps)
def _scatter_add(tgt, idx, src, axis=0):
    return tgt.clone().index_add_(axis, idx, src)
def _segment_sum(src, seg, n):
    out = torch.zeros((n,) + src.shape[1:], dtype=src.dtype)
    return out.index_add_(0, seg, src)
def _pad(x, pw):
    flat = tuple(v for pair in reversed(pw) for v in pair)
    return torch.nn.functional.pad(x, flat)

kernel_name = 'sequential_preLN__softmax_full_mha__glu_gated_swiglu__prompt'

def setup_inputs():

    _w = (lambda a: (lambda t: t.to(torch.bfloat16) if t.is_floating_point() else t)(torch.as_tensor(a)))
    def _A_setup():
        B, S, D = 1, 2048, 512
        return {
            "x": _w((lambda *s: torch.randn(*s, dtype=torch.bfloat16) * 0.05)(B, S, D)),
            "wqkv": _w((lambda *s: torch.randn(*s, dtype=torch.bfloat16) * 0.05)(D, 3 * D)),
            "wo": _w((lambda *s: torch.randn(*s, dtype=torch.bfloat16) * 0.05)(D, D)),
        }
    _A_in = _A_setup()

    def _B_setup():
        B, S, D, F = 1, 2048, 512, 1792
        return {
            "x": _w((lambda *s: torch.randn(*s, dtype=torch.bfloat16) * 0.05)(B, S, D)),
            "w1": _w((lambda *s: torch.randn(*s, dtype=torch.bfloat16) * 0.4)(D, F) * (2.0 / D) ** 0.5),
            "w3": _w((lambda *s: torch.randn(*s, dtype=torch.bfloat16) * 0.4)(D, F) * (2.0 / D) ** 0.5),
            "w2": _w((lambda *s: torch.randn(*s, dtype=torch.bfloat16) * 0.4)(F, D) * (2.0 / F) ** 0.5),
        }
    _B_in = _B_setup()

    return {
        "A_x": _A_in["x"],
        "A_wqkv": _A_in["wqkv"],
        "A_wo": _A_in["wo"],
        "B_x": _B_in["x"],
        "B_w1": _B_in["w1"],
        "B_w3": _B_in["w3"],
        "B_w2": _B_in["w2"],
    }

def reference(A_x, A_wqkv, A_wo, B_x, B_w1, B_w3, B_w2):
    def _A_ref(x, wqkv, wo):
        B, S, D = x.shape
        H = 32; Dh = D // H
        qkv = (lambda x, *d: x.permute(*d))((x @ wqkv).reshape(B, S, 3, H, Dh), 2, 0, 3, 1, 4)
        q, k, v = qkv[0], qkv[1], qkv[2]
        scale = Dh ** -0.5
        scores = torch.einsum("bhqd,bhkd->bhqk", q, k) * scale
        p = _softmax(scores, axis=-1)
        o = torch.einsum("bhqk,bhkd->bhqd", p, v)
        return (lambda x, *d: x.permute(*d))(o, 0, 2, 1, 3).reshape(B, S, D) @ wo

    def _B_ref(x, w1, w3, w2):
        gate = torch.einsum("bsd,df->bsf", x, w1)
        up = torch.einsum("bsd,df->bsf", x, w3)
        h = _silu(gate) * up
        out = torch.einsum("bsf,fd->bsd", h, w2)
        return out

    x = A_x
    h = x + _A_ref(_layernorm(x, axis=-1), A_wqkv, A_wo)
    h2 = h + _B_ref(_layernorm(h, axis=-1), B_w1, B_w3, B_w2)
    return h2
```

```python
import re

TRANS = ('v_exp_f32', 'v_log_f32', 'v_rcp_f32', 'v_rsq_f32', 'v_sqrt_f32', 'v_sin_f32', 'v_cos_f32',
         'v_exp_f16', 'v_rcp_f16', 'v_rcp_iflag_f32')

def _regs(tok):
    tok = tok.strip()
    tok = tok.lstrip('-').strip('|')
    if tok.startswith('abs(') or tok.startswith('neg('):
        tok = tok[4:-1]
    m = re.fullmatch(r'([vas])(\d+)', tok)
    if m:
        return [(m.group(1), int(m.group(2)))]
    m = re.fullmatch(r'([vas])\[(\d+):(\d+)\]', tok)
    if m:
        return [(m.group(1), i) for i in range(int(m.group(2)), int(m.group(3)) + 1)]
    if tok == 'vcc':
        return [('s', 106), ('s', 107)]
    if tok == 'vcc_lo':
        return [('s', 106)]
    if tok == 'vcc_hi':
        return [('s', 107)]
    if tok == 'exec':
        return [('s', 126), ('s', 127)]
    if tok == 'm0':
        return [('s', 124)]
    return []

class Ins:
    __slots__ = ('text', 'op', 'dst', 'src', 'kind', 'states', 'srcC', 'passes', 'label', 'target', 'sdwa')
    def __init__(self, text):
        self.text = text
        self.label = None
        self.target = None
        self.dst = []
        self.src = []
        self.srcC = []
        self.passes = 0
        self.states = 1
        self.sdwa = False
        t = text.split(';')[0].split('//')[0].strip()
        if not t:
            self.op = ''
            self.kind = 'none'
            self.states = 0
            return
        if t.endswith(':'):
            self.op = ''
            self.kind = 'label'
            self.label = t[:-1]
            self.states = 0
            return
        if t.startswith('.'):
            self.op = t
            self.kind = 'none'
            self.states = 0
            return
        parts = t.split(None, 1)
        op = parts[0]
        self.op = op
        rest = parts[1] if len(parts) > 1 else ''
        ops = [o.strip() for o in rest.split(',')] if rest else []
        mods = ''
        if ops:
            fixed = []
            depth = 0
            cur = ''
            for ch in rest:
                if ch == '[':
                    depth += 1
                if ch == ']':
                    depth -= 1
                if ch == ',' and depth == 0:
                    fixed.append(cur.strip())
                    cur = ''
                else:
                    cur += ch
            fixed.append(cur.strip())
            last = fixed[-1].split(None, 1)
            if len(last) > 1:
                fixed[-1] = last[0]
                mods = last[1]
            ops = fixed
        R = [_regs(o) for o in ops]
        base = re.sub(r'_(e32|e64|sdwa|dpp)$', '', op)
        if op == 's_nop':
            self.kind = 'salu'
            self.states = int(ops[0], 0) + 1
        elif op.startswith('s_cbranch') or op == 's_branch':
            self.kind = 'branch'
            self.target = ops[0]
        elif op.startswith('s_'):
            self.kind = 'salu'
            if op.startswith('s_cmp') or op.startswith('s_waitcnt') or op in ('s_barrier', 's_endpgm', 's_setprio', 's_sleep') or op.startswith('s_bitcmp'):
                for r in R:
                    self.src += r
            else:
                if R:
                    self.dst = R[0]
                for r in R[1:]:
                    self.src += r
                if 'saveexec' in op:
                    self.dst = self.dst + [('s', 126), ('s', 127)]
        elif op.startswith('v_mfma'):
            self.kind = 'mfma'
            self.dst = R[0]
            self.src = R[1] + R[2]
            self.srcC = R[3]
            self.passes = 8 if '32x32' in op else 4
        elif op.startswith('v_'):
            self.kind = 'valu'
            if base.startswith('v_permlane') and 'swap' in base:
                self.dst = R[0] + R[1]
                self.src = R[0] + R[1]
            elif base.startswith('v_cmpx'):
                self.dst = [('s', 126), ('s', 127)]
                for r in R:
                    self.src += r
            elif base in ('v_add_co_u32', 'v_sub_co_u32', 'v_addc_co_u32', 'v_subb_co_u32', 'v_subrev_co_u32'):
                self.dst = R[0] + R[1]
                for r in R[2:]:
                    self.src += r
            else:
                self.dst = R[0]
                for r in R[1:]:
                    self.src += r
                if base in ('v_fmac_f32', 'v_dot2c_f32_bf16', 'v_mac_f32', 'v_pk_fmac_f16', 'v_writelane_b32') or 'UNUSED_PRESERVE' in mods:
                    self.src += R[0]
                if base == 'v_cndmask_b32' and len(ops) == 3:
                    self.src += [('s', 106), ('s', 107)]
            if 'dst_sel' in mods and 'dst_sel:DWORD' not in mods:
                self.sdwa = True
            if 'op_sel' in mods and not base.startswith('v_pk') and not base.startswith('v_dot2'):
                self.sdwa = True
        elif op.startswith('ds_'):
            self.kind = 'ds'
            if op.startswith('ds_read') or op.startswith('ds_bpermute') or op.startswith('ds_permute') or op.startswith('ds_swizzle') or '_rtn' in op:
                self.dst = R[0]
                for r in R[1:]:
                    self.src += r
            else:
                for r in R:
                    self.src += r
        elif op.startswith('buffer_') or op.startswith('global_') or op.startswith('flat_'):
            self.kind = 'vmem'
            lds = re.search(r'\blds\b', mods) is not None or '_lds_' in op
            if lds:
                self.kind = 'vmem_lds'
                for r in R:
                    self.src += r
                self.src += [('s', 124)]
            elif '_load' in op:
                self.dst = R[0]
                for r in R[1:]:
                    self.src += r
            elif 'atomic' in op and re.search(r'\bsc0\b', mods):
                self.dst = R[0]
                for r in R:
                    self.src += r
            elif op in ('buffer_wbl2', 'buffer_inv'):
                pass
            else:
                for r in R:
                    self.src += r
                if re.search(r'x[34]$', op):
                    self.kind = 'vmem_wstore'
                    self.srcC = R[0] if op.startswith('buffer_') else R[1]
        else:
            raise ValueError('unknown instruction: ' + text)

def _ov(a, b):
    return bool(set(a) & set(b))

def need(prod, cons):
    n = 0
    pk, ck = prod.kind, cons.kind
    isv = lambda L: [r for r in L if r[0] in 'va']
    iss = lambda L: [r for r in L if r[0] == 's']
    cbase = re.sub(r'_(e32|e64|sdwa|dpp)$', '', cons.op)
    pbase = re.sub(r'_(e32|e64|sdwa|dpp)$', '', prod.op)
    if pk == 'valu':
        pv = isv(prod.dst)
        ps = iss(prod.dst)
        isdot = pbase.startswith('v_dot')
        if ck == 'mfma' and _ov(pv, cons.src + cons.srcC):
            n = max(n, 3 if isdot else 2)
        if ck == 'mfma' and ('s', 126) in ps:
            n = max(n, 4)
        if isdot:
            if ck in ('valu', 'ds', 'vmem', 'vmem_wstore', 'vmem_lds', 'mfma') and _ov(pv, cons.src + cons.dst + cons.srcC):
                if cbase == pbase:
                    ab = cons.src[:]
                    if pbase == 'v_dot2c_f32_bf16':
                        ab = [r for r in cons.src if r not in cons.dst]
                    else:
                        ab = cons.src[:-1]
                    if _ov(pv, ab):
                        n = max(n, 3)
                else:
                    n = max(n, 3)
        if pbase in TRANS and ck == 'valu' and cbase not in TRANS and _ov(pv, cons.src):
            n = max(n, 1)
        if pbase in TRANS and ck in ('ds', 'vmem', 'vmem_wstore') and _ov(pv, cons.src):
            n = max(n, 1)
        if prod.sdwa and ck == 'valu' and _ov(pv, cons.src + cons.dst):
            n = max(n, 1)
        if cbase.startswith('v_permlane') and _ov(pv, cons.src):
            n = max(n, 2)
        if cbase.startswith('v_permlane') and ('s', 126) in ps:
            n = max(n, 4)
        if cbase in ('v_readfirstlane_b32', 'v_readlane_b32') and _ov(pv, cons.src):
            n = max(n, 1)
        if cbase in ('v_readfirstlane_b32', 'v_readlane_b32', 'v_writelane_b32') and (('s', 126) in ps or _ov(ps, cons.src)):
            n = max(n, 4)
        if cons.op.endswith('_dpp') or ' row_' in cons.text or 'quad_perm' in cons.text:
            if _ov(pv, cons.src):
                n = max(n, 2)
            if ('s', 126) in ps:
                n = max(n, 5)
        if ps:
            if ck in ('vmem', 'vmem_wstore', 'vmem_lds') and _ov(ps, cons.src):
                n = max(n, 5)
            if ck in ('valu', 'mfma') and _ov(ps, cons.src):
                n = max(n, 2)
    if pk == 'mfma':
        P = prod.passes
        tA = {4: 8, 8: 12}[P]
        tC = {4: 6, 8: 10}[P]
        if ck == 'mfma':
            if _ov(prod.dst, cons.src):
                n = max(n, tA)
            if _ov(prod.dst, cons.srcC):
                if not (prod.dst == cons.srcC and prod.passes == cons.passes):
                    n = max(n, tC)
            elif _ov(prod.dst, cons.dst):
                n = max(n, tC)
        elif ck in ('valu', 'ds', 'vmem', 'vmem_wstore', 'vmem_lds'):
            if _ov(prod.dst, cons.src + cons.dst):
                n = max(n, tA)
        if ck == 'valu' and _ov(isv(prod.srcC), cons.dst):
            n = max(n, {4: 3, 8: 7}[P])
        if ck in ('ds', 'vmem') and _ov(isv(prod.srcC), cons.dst):
            n = max(n, {4: 3, 8: 7}[P])
    if pk == 'vmem_wstore':
        if ck == 'valu' and _ov(prod.srcC, cons.dst):
            n = max(n, 2)
        elif ck in ('ds', 'vmem', 'mfma') and _ov(prod.srcC, cons.dst):
            n = max(n, 1)
    if pk == 'salu' and ('s', 124) in prod.dst and ck == 'vmem_lds':
        n = max(n, 1)
    return n

MAXW = 12

class Asm:
    def __init__(self):
        self.lines = []
    def __call__(self, s):
        for l in s.split('\n'):
            l = l.strip()
            if l:
                self.lines.append(l)
    def label(self, name):
        self.lines.append(name + ':')
    def finish(self, verbose_name=None):
        ins = [Ins(l) for l in self.lines]
        out = []
        nins = 0
        for c in ins:
            if c.states and c.kind not in ('none', 'label'):
                dist = 0
                req = 0
                for p in reversed(out):
                    if dist >= MAXW:
                        break
                    if p.kind == 'branch' and p.op == 's_branch':
                        break
                    if p.op == 's_endpgm':
                        break
                    k = need(p, c)
                    if k - dist > req:
                        req = k - dist
                    dist += p.states
                if req > 0:
                    nins += req
                    out.append(Ins(f's_nop {req-1}'))
            out.append(c)
        labels = {c.label: i for i, c in enumerate(out) if c.kind == 'label'}
        for i, b in enumerate(out):
            if b.kind == 'branch':
                t = labels[b.target]
                d2 = 0
                j = t
                while j < len(out) and d2 < MAXW:
                    c = out[j]
                    if c.states:
                        dist = d2 + 1
                        k = i - 1
                        while k >= 0 and dist < MAXW:
                            p = out[k]
                            if p.kind == 'branch' and p.op == 's_branch':
                                break
                            nd = need(p, c)
                            if nd > dist:
                                raise RuntimeError(f'hazard across branch {b.text}: {p.text} -> {c.text} need {nd} have {dist}')
                            dist += p.states
                            k -= 1
                        d2 += c.states
                        if c.op in ('s_branch', 's_endpgm'):
                            break
                    j += 1
        if verbose_name:
            print(f'{verbose_name}: {sum(1 for c in out if c.states)} instructions, {nins} wait states inserted')
        txt = []
        for c in out:
            if c.kind == 'label' or c.op.startswith('.'):
                txt.append(c.text)
            else:
                txt.append('    ' + c.text)
        return '\n'.join(txt) + '\n'

def kernel_text(name, body, vgpr, agpr=0, sgpr=96):
    accum = (vgpr + 3) // 4 * 4
    total = accum + agpr
    return f'''.text
.globl {name}
.p2align 8
.type {name},@function
{name}:
{body}.section .rodata,"a"
.p2align 6
.amdhsa_kernel {name}
  .amdhsa_next_free_vgpr {total}
  .amdhsa_next_free_sgpr {sgpr}
  .amdhsa_accum_offset {accum}
  .amdhsa_group_segment_fixed_size 0
  .amdhsa_kernarg_size 80
  .amdhsa_user_sgpr_count 2
  .amdhsa_user_sgpr_kernarg_segment_ptr 1
  .amdhsa_system_sgpr_workgroup_id_x 1
.end_amdhsa_kernel
'''


import os
PROF = int(os.environ.get("PROF", "0"))
PROFBASE = 0x1C00000

def prof_start(A):
    if PROF:
        A("s_memrealtime s[88:89]")
        A("s_memtime s[90:91]")
        A("s_load_dwordx2 s[92:93], s[0:1], 72")
        for i in range(8):
            A(f"s_mov_b32 s{76+i}, 0")

def prof_mark(A, i, wait=""):
    if PROF:
        if wait:
            A(wait)
        A("s_memtime s[84:85]")
        A("s_waitcnt lgkmcnt(0)")
        A(f"s_sub_u32 s{76+i}, s84, s90")

def prof_end(A, kidx, nwaves):
    if PROF:
        A("s_waitcnt vmcnt(0) lgkmcnt(0)")
        A("s_memrealtime s[84:85]")
        A("s_memtime s[86:87]")
        A("s_mov_b32 s94, 0x2000000")
        A("s_mov_b32 s95, 0x20000")
        A("s_waitcnt lgkmcnt(0)")
        A("s_sub_u32 s86, s86, s90")
        A(f"s_mul_i32 s85, s2, {nwaves}")
        A("s_add_u32 s85, s85, s3")
        A("s_lshl_b32 s85, s85, 6")
        A(f"s_add_u32 s85, s85, {PROFBASE + kidx * 0x20000}")
        A("s_mov_b64 exec, 1")
        A("v_mov_b32 v1, 0")
        regs = [88, 84, 86, 86] + list(range(76, 84))
        for i, r in enumerate(regs):
            A(f"v_mov_b32 v{4+i}, s{r}")
        for i in range(3):
            A(f"buffer_store_dwordx4 v[{4+4*i}:{7+4*i}], v1, s[92:95], s85 offen offset:{16*i}")
```

```python
from asm import *
from layout import *
from gen import srd, halfsum, split3, pack_m, pack_c, ONES, PERMHI

TS = 2080

def k2(nq=2):
    A = Asm()
    nw = 8 // nq
    LDS = 66 * TS
    Q = [8, 12]
    KB = [16, 20]
    VB = [24, 32]
    N = [40, 56]
    S = [72, 88]
    P = [104, 112]
    O = [120, 136]
    if nq == 1:
        Q = [8]; N = [40]; S = [56, 72]; P = [88, 96]; O = [104]
    NV = O[-1] + 16
    vKa, vVa = 4, 5
    prof_start(A)
    A("""
    s_load_dwordx2 s[8:9], s[0:1], 72
    s_cmp_ge_u32 s2, 256
    s_cbranch_scc1 K2_end
    v_lshrrev_b32 v1, 6, v0
    v_and_b32 v2, 63, v0
    v_readfirstlane_b32 s3, v1
    v_lshlrev_b32 v3, 4, v2
    s_and_b32 s24, s2, 7
    s_lshr_b32 s25, s2, 3
    s_lshl_b32 s26, s24, 2
    s_lshr_b32 s27, s25, 3
    s_add_u32 s26, s26, s27
    s_and_b32 s27, s25, 7
    """)
    A(f"""
    s_lshl_b32 s28, s27, 3
    s_mul_i32 s29, s3, {nq}
    s_add_u32 s28, s28, s29
    s_lshl_b32 s30, s26, 17
    s_add_u32 s30, s30, {KV}
    s_lshl_b32 s31, s3, 11
    s_add_u32 s30, s30, s31
    s_mul_i32 s31, s3, {TS}
    s_lshl_b32 s32, s26, 6
    s_add_u32 s32, s32, s28
    s_lshl_b32 s32, s32, 10
    s_waitcnt lgkmcnt(0)
    """)
    srd(A, 20, 8, 9, WS_BYTES)
    ntl = 64 // nw
    def dma_tile():
        A("s_mov_b32 m0, s31")
        A(f"s_add_u32 s31, s31, {nw*TS}")
        A("buffer_load_dwordx4 v3, s[20:23], s30 offen lds")
        A("buffer_load_dwordx4 v3, s[20:23], s30 offen offset:1024 lds")
        A(f"s_add_u32 s30, s30, {nw*2048}")
    first = 8 // nw
    for t in range(first):
        dma_tile()
    for q in range(nq):
        A(f"buffer_load_dwordx4 v[{Q[q]}:{Q[q]+3}], v3, s[20:23], s32 offen offset:{1024*q}")
    for t in range(ntl - first):
        dma_tile()
    A(f"""
    v_mov_b32 v6, {ONES}
    v_mov_b32 v7, {ONES}
    v_mul_u32_u24 v{KB[0]}, {TS}, v2
    v_mov_b32 v{vKa}, v3
    v_and_b32 v{KB[0]+1}, 15, v2
    v_lshrrev_b32 v{KB[0]+2}, 5, v2
    v_lshl_add_u32 v{KB[0]+1}, v{KB[0]+2}, 4, v{KB[0]+1}
    v_lshlrev_b32 v{KB[0]+1}, 5, v{KB[0]+1}
    v_and_b32 v{KB[0]+2}, 16, v2
    v_cmp_eq_u32 vcc, 0, v{KB[0]+2}
    v_mov_b32 v{KB[0]+3}, 1024
    v_cndmask_b32 v{vVa}, v{KB[0]+3}, v{KB[0]+1}, vcc
    v_add_u32 v{vVa}, 1024, v{vVa}
    """)
    for i in range(4):
        A(f"ds_write_b64 v{KB[0]}, v[6:7] offset:{2048+8*i}")
    A(f"s_mov_b32 s34, 1")
    A(f"s_mov_b32 s36, 0")
    prof_mark(A, 0)
    A(f"s_waitcnt vmcnt({2*(ntl-first)}) lgkmcnt(0)")
    A("s_barrier")
    prof_mark(A, 1)
    A(f"ds_read_b128 v[{KB[0]}:{KB[0]+3}], v{vKa}")
    A("s_waitcnt lgkmcnt(0)")
    for q in range(nq):
        A(f"v_mfma_f32_32x32x16_bf16 v[{S[q]}:{S[q]+15}], v[{KB[0]}:{KB[0]+3}], v[{Q[q]}:{Q[q]+3}], 0")
    for q in range(nq):
        s = S[q]
        A(f"v_max3_f32 v{6+q}, v{s}, v{s+1}, v{s+2}")
        for r in range(3, 15, 2):
            A(f"v_max3_f32 v{6+q}, v{6+q}, v{s+r}, v{s+r+1}")
        A(f"v_max_f32 v{6+q}, v{6+q}, v{s+15}")
    A.label("K2_setmax")
    halfsum(A, [6 + q for q in range(nq)], P[0], op="v_max_f32")
    for q in range(nq):
        for r in range(16):
            A(f"v_sub_f32 v{N[q]+r}, 0, v{6+q}")
        for r in range(16):
            A(f"v_mov_b32 v{O[q]+r}, 0")
    for r in range(8):
        A(f"v_mov_b32 v{P[1]+r}, 0")
        A(f"v_mov_b32 v{VB[1]+r}, 0")
    kahead = 2 if nq == 1 else 1
    A(f"ds_read_b128 v[{KB[0]}:{KB[0]+3}], v{vKa}")
    if kahead == 2:
        A(f"ds_read_b128 v[{KB[1]}:{KB[1]+3}], v{vKa} offset:{TS}")
    A("s_mov_b32 s35, 0")
    A("s_waitcnt lgkmcnt(0)")
    A(f"v_mfma_f32_32x32x16_bf16 v[{S[0]}:{S[0]+15}], v[{KB[0]}:{KB[0]+3}], v[{Q[0]}:{Q[0]+3}], v[{N[0]}:{N[0]+15}]")
    prof_mark(A, 2)
    A("s_nop 7")
    A(".p2align 6")
    A.label("K2_loop")
    T = 8
    for u in range(T * nq):
        kt, q = u // nq, u % nq
        un = u + 1
        ktn, qn = un // nq, un % nq
        up = u - 1
        ktp, qp = (up // nq), up % nq
        s = S[u & 1]; p = P[u & 1]
        sn = S[un & 1]; pp = P[up & 1]
        M = [f"v_mfma_f32_32x32x16_bf16 v[{sn}:{sn+15}], v[{KB[ktn&1]}:{KB[ktn&1]+3}], v[{Q[qn]}:{Q[qn]+3}], v[{N[qn]}:{N[qn]+15}]",
             f"v_mfma_f32_32x32x16_bf16 v[{O[qp]}:{O[qp]+15}], v[{VB[ktp&1]}:{VB[ktp&1]+3}], v[{pp}:{pp+3}], v[{O[qp]}:{O[qp]+15}]",
             f"v_mfma_f32_32x32x16_bf16 v[{O[qp]}:{O[qp]+15}], v[{VB[ktp&1]+4}:{VB[ktp&1]+7}], v[{pp+4}:{pp+7}], v[{O[qp]}:{O[qp]+15}]"]
        e = lambda i: f"v_exp_f32 v{s+i}, v{s+i}"
        c = lambda i: f"v_cvt_pk_bf16_f32 v{p+i}, v{s+2*i}, v{s+2*i+1}"
        rd = []
        if q == 0:
            kk = kt + kahead
            rd = [f"ds_read_b128 v[{KB[kk&1]}:{KB[kk&1]+3}], v{vKa} offset:{kk*TS}",
                  f"ds_read_b128 v[{VB[kt&1]}:{VB[kt&1]+3}], v{vVa} offset:{kt*TS}",
                  f"ds_read_b128 v[{VB[kt&1]+4}:{VB[kt&1]+7}], v{vVa} offset:{kt*TS+16}"]
        wait_needed = (nq == 1) or (q == 1)
        seq = [e(0)]
        if wait_needed:
            seq.append("s_waitcnt lgkmcnt(0)")
        if q == 0 and kt + kahead == T:
            seq += ["BARRIER"]
        seq += [e(1)] + rd[0:1] + [e(2)] + rd[1:2] + [e(3)] + rd[2:3]
        seq += [c(0), M[0], e(4), e(5), c(1), e(6), e(7), c(2), M[1], e(8), e(9), c(3)]
        seq += [e(10), e(11), c(4), M[2], e(12), e(13), c(5), e(14), e(15), c(6), c(7)]
        for l in seq:
            if l == "BARRIER":
                A(f"""
                s_cmp_eq_u32 s34, 0
                s_cbranch_scc1 K2_nobar
                s_waitcnt vmcnt(0)
                s_barrier
                s_mov_b32 s34, 0
                K2_nobar:
                """)
            else:
                A(l)
    A(f"""
    v_add_u32 v{vKa}, {T*TS}, v{vKa}
    v_add_u32 v{vVa}, {T*TS}, v{vVa}
    s_add_u32 s35, s35, 1
    s_cmp_lt_u32 s35, {64//T}
    s_cbranch_scc1 K2_loop
    """)
    prof_mark(A, 3)
    ul = T * nq - 1
    ql = ul % nq; ktl = ul // nq; pp = P[ul & 1]
    A(f"v_mfma_f32_32x32x16_bf16 v[{O[ql]}:{O[ql]+15}], v[{VB[ktl&1]}:{VB[ktl&1]+3}], v[{pp}:{pp+3}], v[{O[ql]}:{O[ql]+15}]")
    A(f"v_mfma_f32_32x32x16_bf16 v[{O[ql]}:{O[ql]+15}], v[{VB[ktl&1]+4}:{VB[ktl&1]+7}], v[{pp+4}:{pp+7}], v[{O[ql]}:{O[ql]+15}]")
    A(f"v_subrev_u32 v{vKa}, {64*TS}, v{vKa}")
    A(f"v_subrev_u32 v{vVa}, {64*TS}, v{vVa}")
    A("s_waitcnt lgkmcnt(0)")
    A("s_mov_b32 s44, 0x7e800000")
    A("s_nop 5")
    A("s_cmp_lg_u32 s36, 0")
    A("s_cbranch_scc1 K2_fin")
    for q in range(nq):
        o = O[q]
        A(f"v_max3_f32 v{6}, |v{o}|, |v{o+1}|, |v{o+2}|" if q == 0 else f"v_max3_f32 v6, v6, |v{o}|, |v{o+1}|")
        rest = list(range(3, 8)) if q == 0 else list(range(2, 8))
        while rest:
            if len(rest) >= 2:
                A(f"v_max3_f32 v6, v6, |v{o+rest[0]}|, |v{o+rest[1]}|"); rest = rest[2:]
            else:
                A(f"v_max_f32 v6, v6, |v{o+rest[0]}|"); rest = rest[1:]
    if nq == 2:
        A(f"v_max_f32 v7, v{O[0]+8}, v{O[1]+8}")
        A(f"v_add_f32 v{P[0]}, v{O[0]+8}, v{O[1]+8}")
    else:
        A(f"v_mov_b32 v7, v{O[0]+8}")
        A(f"v_mov_b32 v{P[0]}, v{O[0]+8}")
    A(f"""
    v_cmp_gt_f32 vcc, 0x53800000, v7
    v_cmp_o_f32 s[40:41], v{P[0]}, v{P[0]}
    v_cmp_gt_f32 s[42:43], s44, v6
    s_and_b64 s[40:41], s[40:41], vcc
    s_and_b64 s[40:41], s[40:41], s[42:43]
    s_cmp_eq_u64 s[40:41], -1
    s_cbranch_scc1 K2_fin
    """)
    A("s_mov_b32 s36, 1")
    for q in range(nq):
        A(f"v_mov_b32 v{6+q}, 0xff800000")
    A(f"v_mov_b32 v{P[0]}, v{vKa}")
    A("s_mov_b32 s35, 0")
    A.label("K2_maxloop")
    A(f"ds_read_b128 v[{KB[0]}:{KB[0]+3}], v{P[0]}")
    A(f"v_add_u32 v{P[0]}, {TS}, v{P[0]}")
    A("s_waitcnt lgkmcnt(0)")
    for q in range(nq):
        A(f"v_mfma_f32_32x32x16_bf16 v[{S[q]}:{S[q]+15}], v[{KB[0]}:{KB[0]+3}], v[{Q[q]}:{Q[q]+3}], 0")
    for q in range(nq):
        for r in range(0, 16, 2):
            A(f"v_max3_f32 v{6+q}, v{6+q}, v{S[q]+r}, v{S[q]+r+1}")
    A("""
    s_add_u32 s35, s35, 1
    s_cmp_lt_u32 s35, 64
    s_cbranch_scc1 K2_maxloop
    s_branch K2_setmax
    """)
    A.label("K2_fin")
    A(f"""
    s_lshl_b32 s38, s28, 5
    s_add_u32 s38, s38, s26
    s_lshl_b32 s38, s38, 10
    s_add_u32 s38, s38, {OF}
    """)
    for q in range(nq):
        o = O[q]
        A(f"v_rcp_f32 v{6+q}, v{o+8}")
    for q in range(nq):
        o = O[q]
        for r in range(8):
            A(f"v_mul_f32 v{o+r}, v{6+q}, v{o+r}")
        for r in range(4):
            A(f"v_cvt_pk_bf16_f32 v{o+r}, v{o+2*r}, v{o+2*r+1}")
        A(f"buffer_store_dwordx4 v[{o}:{o+3}], v3, s[20:23], s38 offen")
        if q == 0 and nq == 2:
            A(f"s_add_u32 s38, s38, 32768")
    prof_end(A, 2, nw)
    A.label("K2_end")
    A("s_endpgm")
    return ("k2_kernel", A.finish("k2"), NV, 0, 64 * nw, LDS)

def all_kernels():
    import sys, os
    nq = int(os.environ.get("NQ", "2"))
    import kern3
    return [k2(nq), kern3.k3(), kern3.k4(), kern3.k5()]
```

```python
from asm import *
from layout import *
from gen import srd, halfsum, split3, pack_m, pack_c, ONES, PERMHI
import os

class VM:
    def __init__(self, A):
        self.A = A
        self.ops = []
        self.done = 0
    def issue(self, text, tag=None):
        self.A(text)
        self.ops.append(tag)
    def count(self, tag):
        idx = max(i for i, t in enumerate(self.ops) if t == tag)
        return idx
    def wait(self, tag, extra=""):
        idx = self.count(tag)
        if idx < self.done:
            if extra:
                self.A(f"s_waitcnt {extra}")
            return
        n = len(self.ops) - 1 - idx
        assert n <= 63, n
        self.A(f"s_waitcnt vmcnt({n}) {extra}")
        self.done = idx + 1

def gemm64(name, kidx, NKS, DEPTH, abase, bbase, final):
    A = Asm()
    L = name.upper()
    KW = NKS // 4
    ACC = [16 * j for j in range(4)]
    BUF0 = 24
    NB = DEPTH
    buf = lambda s, i: BUF0 + 16 * (s % NB) + 4 * i
    ACC0 = BUF0 + 16 * NB
    acc = lambda j: ACC0 + 16 * j
    NV = ACC0 + 64
    RES = 8
    prof_start(A)
    A(f"""
    s_load_dwordx2 s[8:9], s[0:1], 72
    s_load_dwordx2 s[4:5], s[0:1], {0 if final == 'h' else 56}
    s_cmp_ge_u32 s2, 256
    s_cbranch_scc1 {L}_end
    v_lshrrev_b32 v1, 6, v0
    v_and_b32 v2, 63, v0
    v_readfirstlane_b32 s3, v1
    v_lshlrev_b32 v3, 4, v2
    v_add_u32 v4, 4096, v3
    s_and_b32 s24, s2, 7
    s_lshr_b32 s25, s2, 3
    s_lshl_b32 s26, s24, 2
    s_lshr_b32 s27, s25, 3
    s_add_u32 s26, s26, s27
    s_and_b32 s27, s25, 7
    s_and_b32 s28, s3, 1
    s_lshr_b32 s29, s3, 1
    s_lshl_b32 s30, s27, 1
    s_lshl_b32 s31, s26, 1
    s_add_u32 s30, s30, s28
    s_add_u32 s31, s31, s29
    s_xor_b32 s32, s30, 1
    s_xor_b32 s33, s31, 1
    s_mul_i32 s34, s3, {KW*1024}
    s_mul_i32 s36, s30, {NKS*1024}
    s_mul_i32 s37, s31, {NKS*1024}
    s_mul_i32 s38, s32, {NKS*1024}
    s_mul_i32 s39, s33, {NKS*1024}
    s_add_u32 s35, s34, {abase}
    s_add_u32 s34, s34, {bbase}
    s_add_u32 s36, s36, s35
    s_add_u32 s37, s37, s34
    s_add_u32 s38, s38, s35
    s_add_u32 s39, s39, s34
    s_waitcnt lgkmcnt(0)
    """)
    srd(A, 20, 8, 9, WS_BYTES)
    vm = VM(A)
    def loads(s):
        if s and s % 8 == 0:
            for i in range(4):
                A(f"s_add_u32 s{36+i}, s{36+i}, 8192")
        for i in range(4):
            vm.issue(f"buffer_load_dwordx4 v[{buf(s,i)}:{buf(s,i)+3}], v{3 + ((s>>2)&1)}, s[20:23], s{36+i} offen offset:{(s&3)*1024}", ('k', s))
    for s in range(min(NB, KW)):
        loads(s)
    srd(A, 12, 4, 5, 2048 * 1024)
    A(f"""
    v_and_b32 v5, 31, v2
    v_lshrrev_b32 v6, 5, v2
    v_lshlrev_b32 v7, 10, v5
    v_lshl_add_u32 v7, v6, 4, v7
    s_lshl_b32 s40, s31, 15
    s_lshl_b32 s41, s30, 6
    s_add_u32 s40, s40, s41
    s_lshl_b32 s42, s31, 5
    s_lshl_b32 s43, s30, 1
    s_add_u32 s42, s42, s43
    s_lshl_b32 s42, s42, 10
    s_add_u32 s42, s42, {HF}
    """)
    for j in range(1, 4):
        A(f"s_xor_b32 s44, s3, {j}")
        A(f"s_mul_i32 s44, s44, 12288")
        A(f"v_add_u32 v{16+j}, s44, v3")
    A("s_mul_i32 s44, s3, 12288")
    A("v_add_u32 v16, s44, v3")
    def resid():
        if final == 'h':
            vm.issue(f"buffer_load_dwordx4 v[{RES}:{RES+3}], v7, s[12:15], s40 offen", 'res')
            vm.issue(f"buffer_load_dwordx4 v[{RES+4}:{RES+7}], v7, s[12:15], s40 offen offset:32", 'res')
        else:
            vm.issue(f"buffer_load_dwordx4 v[{RES}:{RES+3}], v3, s[20:23], s42 offen", 'res')
            vm.issue(f"buffer_load_dwordx4 v[{RES+4}:{RES+7}], v3, s[20:23], s42 offen offset:1024", 'res')
    if NB >= KW:
        resid()
    prof_mark(A, 0)
    for s in range(KW):
        vm.wait(('k', s))
        if s == 0:
            prof_mark(A, 1)
        order = [1, 2, 3, 0] if s == KW - 1 else [0, 1, 2, 3]
        for j in order:
            n, b = j & 1, j >> 1
            W = buf(s, 2 * n); B = buf(s, 2 * b + 1)
            C = "0" if s == 0 else f"v[{acc(j)}:{acc(j)+15}]"
            A(f"v_mfma_f32_32x32x16_bf16 v[{acc(j)}:{acc(j)+15}], v[{W}:{W+3}], v[{B}:{B+3}], {C}")
        if s >= 1 and s - 1 + NB < KW:
            loads(s - 1 + NB)
            if s - 1 + NB == KW - 1:
                resid()
    prof_mark(A, 2)
    for j in range(1, 4):
        for r in range(4):
            A(f"ds_write_b128 v{16+j}, v[{acc(j)+4*r}:{acc(j)+4*r+3}] offset:{(j-1)*4096+r*1024}")
    vm.wait('res')
    if final == 'h':
        for p in (0, 1, 4, 5):
            A(f"v_permlane32_swap_b32 v{RES+p}, v{RES+p+2}")
    U = BUF0
    for d in range(8):
        A(f"v_lshlrev_b32 v{U+2*d}, 16, v{RES+d}")
        A(f"v_and_b32 v{U+2*d+1}, 0xffff0000, v{RES+d}")
    for r in range(16):
        A(f"v_add_f32 v{acc(0)+r}, v{acc(0)+r}, v{U+r}")
    A("s_waitcnt lgkmcnt(0)")
    A("s_barrier")
    for j in range(1, 4):
        for r in range(4):
            A(f"ds_read_b128 v[{acc(j)+4*r}:{acc(j)+4*r+3}], v16 offset:{(j-1)*4096+r*1024}")
    for j in range(1, 4):
        for r in range(4):
            A(f"s_waitcnt lgkmcnt({11-((j-1)*4+r)})")
            for e in range(4):
                A(f"v_add_f32 v{acc(0)+4*r+e}, v{acc(0)+4*r+e}, v{acc(j)+4*r+e}")
    prof_mark(A, 3)
    a0 = acc(0)
    P = acc(1)
    for d in range(8):
        A(f"v_cvt_pk_bf16_f32 v{P+d}, v{a0+2*d}, v{a0+2*d+1}")
    if final == 'h':
        A(f"buffer_store_dwordx4 v[{P}:{P+3}], v3, s[20:23], s42 offen")
        A(f"buffer_store_dwordx4 v[{P+4}:{P+7}], v3, s[20:23], s42 offen offset:1024")
        A(f"v_add_f32 v8, v{a0}, v{a0+1}")
        A(f"v_mul_f32 v9, v{a0}, v{a0}")
        A(f"v_add_f32 v10, v{a0+2}, v{a0+3}")
        A(f"v_mul_f32 v11, v{a0+1}, v{a0+1}")
        for r in range(2, 16):
            A(f"v_fma_f32 v{9 + 2*(r&1)}, v{a0+r}, v{a0+r}, v{9 + 2*(r&1)}")
            if r >= 4:
                A(f"v_add_f32 v{8 + 2*(r&1)}, v{8 + 2*(r&1)}, v{a0+r}")
        A(f"""
        v_add_f32 v8, v8, v10
        v_add_f32 v9, v9, v11
        v_lshlrev_b32 v12, 7, v5
        v_lshl_add_u32 v12, v6, 2, v12
        v_permlane32_swap_b32 v8, v9
        s_lshl_b32 s44, s31, 12
        s_lshl_b32 s45, s30, 3
        s_add_u32 s44, s44, s45
        s_add_u32 s44, s44, {ST}
        v_add_f32 v8, v8, v9
        buffer_store_dword v8, v12, s[20:23], s44 offen
        """)
    else:
        for p in (0, 1, 4, 5):
            A(f"v_permlane32_swap_b32 v{P+p}, v{P+p+2}")
        A(f"buffer_store_dwordx4 v[{P}:{P+3}], v7, s[12:15], s40 offen")
        A(f"buffer_store_dwordx4 v[{P+4}:{P+7}], v7, s[12:15], s40 offen offset:32")
    prof_end(A, kidx, 4)
    A.label(f"{L}_end")
    A("s_endpgm")
    return (f"{name}_kernel", A.finish(name), NV, 0, 256, 49152)

def k3():
    return gemm64("k3", 3, 32, 8, WOF, OF, 'h')

def k5():
    return gemm64("k5", 5, 112, int(os.environ.get("K5D", "10")), W2F, GF, 'out')

def k4():
    A = Asm()
    T1 = int(os.environ.get("K4T1", "4"))
    RG = 8
    PRE = int(os.environ.get("K4PRE", "4"))
    H = 128
    ACC = [16 + 16 * i for i in range(5)]
    WB = [96, 100, 104]
    MU = 108
    CSR = [112, 116, 12, 124]
    CS = 112
    STR = 96
    vRA, vRB = 120, 121
    TMP = [122, 123]
    prof_start(A)
    A(f"""
    s_load_dwordx2 s[8:9], s[0:1], 72
    s_cmp_ge_u32 s2, 256
    s_cbranch_scc1 K4_end
    v_lshrrev_b32 v1, 6, v0
    v_and_b32 v2, 63, v0
    v_readfirstlane_b32 s3, v1
    v_lshlrev_b32 v3, 4, v2
    s_and_b32 s24, s2, 7
    s_lshr_b32 s25, s2, 3
    s_lshr_b32 s26, s24, 2
    s_lshl_b32 s26, s26, 3
    s_lshr_b32 s27, s25, 2
    s_add_u32 s26, s26, s27
    s_and_b32 s27, s24, 3
    s_lshl_b32 s27, s27, 2
    s_and_b32 s28, s25, 3
    s_add_u32 s27, s27, s28
    s_lshl_b32 s28, s26, 2
    s_add_u32 s28, s28, s3
    s_lshl_b32 s30, s28, 15
    s_add_u32 s30, s30, {HF}
    s_mul_i32 s31, s27, {7*32768}
    s_add_u32 s31, s31, {W13F}
    s_lshl_b32 s33, s3, 10
    s_waitcnt lgkmcnt(0)
    """)
    srd(A, 20, 8, 9, WS_BYTES)
    order = [(t, ks) for ks in range(32) for t in range(T1)] + [(t, ks) for t in range(T1, 7) for ks in range(32)]
    NG = len(order) // 16
    assert T1 == 4
    vm = VM(A)
    A("s_add_u32 s34, s31, s33")
    A("s_lshl_b32 s35, s3, 12")
    A("s_add_u32 s36, s31, s35")
    for i in range(1, 4):
        A(f"v_add_u32 v{3+i}, {i*(32768-1024)}, v3")
    def dma(g):
        L = []
        L.append(("s", f"s_add_u32 m0, s35, {(g % RG)*16384}"))
        if g < 8:
            L.append(("s", f"s_add_u32 s37, s34, {g*4096}"))
            for i in range(4):
                L.append(("v", f"buffer_load_dwordx4 v{3+i}, s[20:23], s37 offen offset:{i*1024} lds", ('g', g)))
        else:
            t = T1 + (g - 8) // 2
            L.append(("s", f"s_add_u32 s37, s36, {t*32768 + ((g-8)&1)*16384}"))
            for i in range(4):
                L.append(("v", f"buffer_load_dwordx4 v3, s[20:23], s37 offen offset:{i*1024} lds", ('g', g)))
        return L
    def hload(g):
        L = [("s", f"s_add_u32 s38, s30, {g*4096}")]
        for i in range(4):
            ks = 4 * g + i
            L.append(("v", f"buffer_load_dwordx4 v[{H+4*ks}:{H+4*ks+3}], v3, s[20:23], s38 offen offset:{i*1024}", ('h', ks)))
        return L
    def emit(x):
        if x[0] == "v":
            vm.issue(x[1], x[2])
        else:
            A(x[1])
    for g in range(PRE):
        for x in dma(g) + hload(g):
            emit(x)
    S4 = ACC[4]
    A(f"""
    v_and_b32 v7, 31, v2
    v_lshrrev_b32 v8, 5, v2
    v_lshlrev_b32 v9, 7, v7
    v_lshl_add_u32 v9, v8, 6, v9
    s_lshl_b32 s39, s28, 12
    s_add_u32 s39, s39, {ST}
    s_mul_i32 s40, s27, 7168
    s_add_u32 s40, s40, {CSF}
    s_mul_i32 s41, s28, {112*1024}
    s_mul_i32 s42, s27, 7168
    s_add_u32 s41, s41, s42
    s_add_u32 s41, s41, {GF}
    s_mov_b32 s43, {PERMHI}
    v_add_u32 v10, 4096, v3
    """)
    for i in range(4):
        vm.issue(f"buffer_load_dwordx4 v[{S4+4*i}:{S4+4*i+3}], v9, s[20:23], s39 offen offset:{16*i}", 'st')
    def csload(t):
        r = CSR[t & 3]
        return ("v", f"buffer_load_dwordx4 v[{r}:{r+3}], v{3 if t < 4 else 10}, s[20:23], s40 offen offset:{(t&3)*1024}", ('cs', t))
    st = []
    st += [f"v_add_f32 v{S4+2*i}, v{S4+2*i}, v{S4+2*i+8}" for i in range(4)]
    st += [f"v_add_f32 v{S4+2*i+1}, v{S4+2*i+1}, v{S4+2*i+9}" for i in range(4)]
    st += [f"v_add_f32 v{S4}, v{S4}, v{S4+4}", f"v_add_f32 v{S4+1}, v{S4+1}, v{S4+5}",
           f"v_add_f32 v{S4+2}, v{S4+2}, v{S4+6}", f"v_add_f32 v{S4+3}, v{S4+3}, v{S4+7}",
           f"v_add_f32 v{S4}, v{S4}, v{S4+2}", f"v_add_f32 v{S4+1}, v{S4+1}, v{S4+3}",
           f"v_mov_b32 v{S4+2}, v{S4}", f"v_mov_b32 v{S4+3}, v{S4+1}",
           f"v_cmp_eq_u32 vcc, 0, v8", "s_nop 0",
           f"v_permlane32_swap_b32 v{S4+2}, v{S4}", f"v_permlane32_swap_b32 v{S4+3}, v{S4+1}",
           f"v_add_f32 v{S4}, v{S4}, v{S4+2}", f"v_add_f32 v{S4+1}, v{S4+1}, v{S4+3}",
           f"v_mul_f32 v{S4}, {1.0/512}, v{S4}", f"v_mul_f32 v{S4+1}, {1.0/512}, v{S4+1}",
           f"v_fma_f32 v{S4+1}, -v{S4}, v{S4}, v{S4+1}", f"v_max_f32 v{S4+1}, 0, v{S4+1}",
           f"v_add_f32 v{vRB}, 0x3727c5ac, v{S4+1}", f"v_rsq_f32 v{vRA}, v{vRB}",
           f"v_cndmask_b32 v{S4}, 0, v{S4}, vcc", f"v_sub_f32 v{S4}, 0, v{S4}",
           f"v_mul_f32 v{vRA}, {-1.4426950408889634}, v{vRA}",
           f"v_and_b32 v{S4+4}, 0xffff0000, v{S4}", f"v_sub_f32 v{S4+6}, v{S4}, v{S4+4}",
           f"v_and_b32 v{S4+5}, 0xffff0000, v{S4+6}", f"v_sub_f32 v{S4+6}, v{S4+6}, v{S4+5}",
           f"v_perm_b32 v{MU}, v{S4+5}, v{S4+4}, s43", f"v_perm_b32 v{MU+1}, v{S4+6}, v{S4+4}, s43",
           f"v_perm_b32 v{MU+2}, v{S4+4}, v{S4+5}, s43", f"v_mov_b32 v{MU+3}, 0"]
    def epi(t, a):
        L = []
        for j in range(0, 8, 2):
            t0, t1 = TMP[0], TMP[1]
            L += [f"v_mul_f32 v{t0}, v{vRA}, v{a+j}", f"v_mul_f32 v{t1}, v{vRA}, v{a+j+1}",
                  f"v_exp_f32 v{t0}, v{t0}", f"v_mul_f32 v{a+j}, v{a+j}, v{a+8+j}",
                  f"v_exp_f32 v{t1}, v{t1}", f"v_mul_f32 v{a+j+1}, v{a+j+1}, v{a+8+j+1}",
                  f"v_fma_f32 v{t0}, v{t0}, v{vRB}, v{vRB}", f"v_fma_f32 v{t1}, v{t1}, v{vRB}, v{vRB}",
                  f"v_rcp_f32 v{t0}, v{t0}", f"v_rcp_f32 v{t1}, v{t1}",
                  f"v_mul_f32 v{a+j}, v{a+j}, v{t0}", f"v_mul_f32 v{a+j+1}, v{a+j+1}, v{t1}",
                  f"v_cvt_pk_bf16_f32 v{a+8+j//2}, v{a+j}, v{a+j+1}"]
        L.append(("v", f"buffer_store_dwordx4 v[{a+8}:{a+11}], v{3 if t < 4 else 10}, s[20:23], s41 offen offset:{(t&3)*1024}", ('gst', t)))
        return L
    slot = {0: 0, 1: 1, 2: 2, 3: 3, 4: 4, 5: 0, 6: 1}
    seq = []
    for f, (t, ks) in enumerate(order):
        seq.append(('w', f, t, ks))
        if ks == 31:
            seq.append(('mu', None, t, None))
    fill = []
    def rd(f):
        return f"ds_read_b128 v[{WB[f%3]}:{WB[f%3]+3}], v3 offset:{(f % (RG*16))*1024}" if (f % (RG*16)) < 64 else \
               f"ds_read_b128 v[{WB[f%3]}:{WB[f%3]+3}], v11 offset:{((f % (RG*16))-64)*1024}"
    A("v_add_u32 v11, 65536, v3")
    prof_mark(A, 0)
    vm.wait(('g', 0))
    A("s_barrier")
    prof_mark(A, 1)
    A(rd(0)); A(rd(1))
    nread = 2
    NF = len(order)
    next_g = PRE
    next_h = PRE
    for idx, (kind, f, t, ks) in enumerate(seq):
        a = ACC[slot[t]]
        if kind == 'w':
            fr = f + 2
            pre = []
            if fr < NF and fr % 16 == 0:
                g = fr // 16
                vm.wait(('g', g))
                A("s_barrier")
                lim = min(NG - 1, g - 2 + RG, g + PRE)
                while next_g <= lim:
                    fill += dma(next_g); next_g += 1
                    if next_h < 8:
                        fill += hload(next_h); next_h += 1
            if f < 128 and t == 0:
                vm.wait(('h', ks))
            A(f"s_waitcnt lgkmcnt({1 if nread > f + 1 else 0})")
            C = "0" if ks == 0 else f"v[{a}:{a+15}]"
            w = WB[f % 3]
            A(f"v_mfma_f32_32x32x16_bf16 v[{a}:{a+15}], v[{w}:{w+3}], v[{H+4*ks}:{H+4*ks+3}], {C}")
            if fr < NF:
                A(rd(fr)); nread += 1
            if f == 40:
                fill.append(("w", 'st'))
                fill += st
            if f == 100:
                fill += [csload(0), csload(1), csload(2), csload(3)]
        else:
            vm.wait(('cs', t))
            r = CSR[t & 3]
            A(f"v_mfma_f32_32x32x16_bf16 v[{a}:{a+15}], v[{r}:{r+3}], v[{MU}:{MU+3}], v[{a}:{a+15}]")
            if t + 4 < 7:
                fill.insert(0, csload(t + 4))
            fill.append(("delay", idx + 2))
            fill += epi(t, a)
        budget = 20
        while fill and budget > 0:
            x = fill[0]
            if isinstance(x, tuple) and x[0] == "delay":
                if idx < x[1]:
                    break
                fill.pop(0); continue
            if isinstance(x, tuple) and x[0] == "w":
                vm.wait(x[1]); fill.pop(0); continue
            cost = 4
            if isinstance(x, str) and (x.startswith("v_exp") or x.startswith("v_rcp") or x.startswith("v_rsq") or x.startswith("v_perml")):
                cost = 8
            if isinstance(x, tuple) and x[0] == "v":
                cost = 8
            if isinstance(x, tuple) and x[0] == "s":
                cost = 2
            if cost > budget and budget < 20:
                break
            budget -= cost
            fill.pop(0)
            if isinstance(x, str):
                A(x)
            else:
                emit(x)
        if kind == 'w' and f in (63, 127, 159, 191):
            prof_mark(A, {63: 2, 127: 3, 159: 4, 191: 5}[f])
        if idx + 1 < len(seq) and seq[idx + 1][0] == 'w' and seq[idx + 1][3] == 0 and seq[idx + 1][2] >= 5:
            tprev = seq[idx + 1][2] - 5
            assert not any(isinstance(x, tuple) and x[0] == 'v' and x[2] == ('gst', tprev) for x in fill), "acc slot not free"
    prof_mark(A, 6)
    for x in fill:
        if isinstance(x, str):
            A(x)
        elif x[0] in ("v", "s"):
            emit(x)
    prof_end(A, 4, 4)
    A.label("K4_end")
    A("s_endpgm")
    return ("k4_kernel", A.finish("k4"), 256, 0, 256, RG * 16384)
```

```python
import sys
from asm import *
from layout import *

ONES = 0x3F803F80
PERMHI = 0x07060302

def srd(A, s, lo, hi, size):
    A(f"s_mov_b32 s{s}, s{lo}")
    A(f"s_mov_b32 s{s+1}, s{hi}")
    A(f"s_mov_b32 s{s+2}, {size}")
    A(f"s_mov_b32 s{s+3}, 0x20000")

def split3(A, x, t1, t2, t3):
    A(f"v_and_b32 v{t1}, 0xffff0000, v{x}")
    A(f"v_sub_f32 v{t3}, v{x}, v{t1}")
    A(f"v_and_b32 v{t2}, 0xffff0000, v{t3}")
    A(f"v_sub_f32 v{t3}, v{t3}, v{t2}")

def pack_c(A, d, hi, mid, lo, sperm):
    A(f"v_perm_b32 v{d}, v{hi}, v{hi}, s{sperm}")
    A(f"v_perm_b32 v{d+1}, v{hi}, v{mid}, s{sperm}")
    A(f"v_perm_b32 v{d+2}, v{lo}, v{mid}, s{sperm}")
    A(f"v_mov_b32 v{d+3}, 0")

def pack_m(A, d, hi, mid, lo, sperm):
    A(f"v_perm_b32 v{d}, v{mid}, v{hi}, s{sperm}")
    A(f"v_perm_b32 v{d+1}, v{lo}, v{hi}, s{sperm}")
    A(f"v_perm_b32 v{d+2}, v{hi}, v{mid}, s{sperm}")
    A(f"v_mov_b32 v{d+3}, 0")

def halfsum(A, regs, tmp0, op="v_add_f32"):
    for i, r in enumerate(regs):
        A(f"v_mov_b32 v{tmp0+i}, v{r}")
    for i, r in enumerate(regs):
        A(f"v_permlane32_swap_b32 v{tmp0+i}, v{r}")
    for i, r in enumerate(regs):
        A(f"{op} v{r}, v{r}, v{tmp0+i}")

def k0():
    A = Asm()
    prof_start(A)
    A("""
    s_load_dwordx4 s[4:7], s[0:1], 32
    s_load_dwordx2 s[8:9], s[0:1], 48
    s_load_dwordx2 s[10:11], s[0:1], 16
    s_load_dwordx2 s[12:13], s[0:1], 72
    s_cmp_ge_u32 s2, 256
    s_cbranch_scc1 K0_exit
    v_lshrrev_b32 v1, 6, v0
    v_and_b32 v2, 63, v0
    v_readfirstlane_b32 s3, v1
    v_lshlrev_b32 v3, 4, v2
    v_lshrrev_b32 v4, 5, v2
    v_bfe_u32 v5, v2, 4, 1
    v_bfe_u32 v6, v2, 2, 2
    v_and_b32 v7, 3, v2
    v_lshl_add_u32 v8, v4, 2, v6
    s_lshl_b32 s30, s3, 13
    s_waitcnt lgkmcnt(0)
    """)
    srd(A, 24, 12, 13, WS_BYTES)
    A("s_cmp_ge_u32 s2, 112")
    A("s_cbranch_scc1 K0_roleB")
    srd(A, 16, 4, 5, 512 * 3584)
    srd(A, 20, 6, 7, 512 * 3584)
    A(f"""
    v_lshrrev_b32 v9, 1, v2
    v_mul_u32_u24 v9, 3584, v9
    v_and_b32 v10, 1, v2
    v_lshl_add_u32 v9, v10, 4, v9
    s_mul_i32 s31, s3, {128*3584}
    s_lshl_b32 s32, s2, 5
    s_add_u32 s31, s31, s32
    s_add_u32 s33, s30, 4096
    """)
    for i in range(4):
        A(f"s_mov_b32 m0, s30")
        A(f"buffer_load_dwordx4 v9, s[16:19], s31 offen offset:{i*1024} lds")
        A(f"s_mov_b32 m0, s33")
        A(f"buffer_load_dwordx4 v9, s[20:23], s31 offen offset:{i*1024} lds")
        if i < 3:
            A(f"s_add_u32 s31, s31, {32*3584-1024}")
    A(f"""
    v_lshlrev_b32 v10, 12, v5
    v_lshl_add_u32 v10, v8, 5, v10
    v_lshl_add_u32 v10, v7, 3, v10
    v_add_u32 v10, s30, v10
    s_lshl_b32 s34, s2, 15
    s_lshl_b32 s35, s3, 13
    s_add_u32 s34, s34, s35
    s_add_u32 s34, s34, {W13F}
    s_mov_b32 s36, {ONES}
    s_mov_b32 s37, {PERMHI}
    v_mov_b32 v11, 0
    v_mov_b32 v12, 0
    s_waitcnt vmcnt(0)
    """)
    for ks in range(8):
        for jj in range(2):
            A(f"ds_read_b64_tr_b16 v[{16+4*ks+2*jj}:{17+4*ks+2*jj}], v10 offset:{512*ks+256*jj}")
    for ks in range(8):
        A(f"s_waitcnt lgkmcnt({14-2*ks})")
        if ks == 4:
            A("s_add_u32 s34, s34, 4096")
        A(f"buffer_store_dwordx4 v[{16+4*ks}:{19+4*ks}], v3, s[24:27], s34 offen offset:{(ks&3)*1024}")
        for d in range(4):
            A(f"v_dot2c_f32_bf16 v{11+(d&1)}, s36, v{16+4*ks+d}")
    A("v_add_f32 v11, v11, v12")
    halfsum(A, [11], 12)
    A(f"""
    v_and_b32 v13, 31, v2
    v_lshlrev_b32 v13, 4, v13
    s_lshl_b32 s35, s3, 2
    v_add_u32 v14, s35, v13
    ds_write_b32 v14, v11 offset:32768
    s_waitcnt lgkmcnt(0)
    s_barrier
    s_cmp_lg_u32 s3, 0
    s_cbranch_scc1 K0_end
    ds_read_b128 v[48:51], v13 offset:32768
    s_lshl_b32 s34, s2, 10
    s_add_u32 s34, s34, {CSF}
    s_waitcnt lgkmcnt(0)
    v_add_f32 v48, v48, v49
    v_add_f32 v50, v50, v51
    v_add_f32 v48, v48, v50
    """)
    split3(A, 48, 49, 50, 51)
    pack_c(A, 52, 49, 50, 51, 37)
    A("buffer_store_dwordx4 v[52:55], v3, s[24:27], s34 offen")
    A("s_branch K0_end")
    A.label("K0_roleB")
    A(f"""
    s_cmp_ge_u32 s2, 224
    s_cselect_b32 s16, s10, s8
    s_cselect_b32 s17, s11, s9
    s_mov_b32 s18, {1792*1024}
    s_mov_b32 s31, 112
    s_mov_b32 s32, 112
    s_mov_b32 s33, {W2F}
    s_cmov_b32 s18, {512*1024}
    s_cmov_b32 s31, 224
    s_cmov_b32 s32, 32
    s_cmov_b32 s33, {WOF}
    s_mov_b32 s19, 0x20000
    s_sub_u32 s31, s2, s31
    s_and_b32 s34, s31, 15
    s_lshr_b32 s35, s31, 4
    s_lshl_b32 s36, s35, 2
    s_add_u32 s36, s36, s3
    s_lshl_b32 s37, s36, 16
    s_lshl_b32 s38, s34, 6
    s_add_u32 s37, s37, s38
    v_lshrrev_b32 v9, 2, v2
    v_lshlrev_b32 v9, 10, v9
    v_lshl_add_u32 v9, v7, 4, v9
    s_mov_b32 m0, s30
    s_mul_i32 s38, s34, s32
    s_lshl_b32 s39, s36, 2
    s_add_u32 s38, s38, s39
    s_lshl_b32 s38, s38, 10
    s_add_u32 s38, s38, s33
    """)
    for i in range(4):
        A(f"buffer_load_dwordx4 v9, s[16:19], s37 offen offset:{i*1024} lds")
        if i < 3:
            A(f"s_add_u32 s37, s37, {15*1024}")
    A(f"""
    v_lshlrev_b32 v10, 5, v5
    v_lshl_add_u32 v10, v8, 6, v10
    v_lshl_add_u32 v10, v7, 3, v10
    v_add_u32 v10, s30, v10
    s_waitcnt vmcnt(0)
    """)
    for ks in range(4):
        for jj in range(2):
            A(f"ds_read_b64_tr_b16 v[{16+4*ks+2*jj}:{17+4*ks+2*jj}], v10 offset:{1024*ks+512*jj}")
    for ks in range(4):
        A(f"s_waitcnt lgkmcnt({6-2*ks})")
        A(f"buffer_store_dwordx4 v[{16+4*ks}:{19+4*ks}], v3, s[24:27], s38 offen offset:{ks*1024}")
    A.label("K0_end")
    prof_end(A, 0, 4)
    A.label("K0_exit")
    A("s_endpgm")
    return ("k0_kernel", A.finish("k0"), 64, 0, 256, 33280)

def k1():
    A = Asm()
    NS = 5
    XREG = 0
    WREG = 4 * NS * 4096
    CSX = WREG + NS * 12288
    LDS = CSX + 1536
    accQ, accK, accV = 32, 48, 64
    XB = [80, 84]
    WB = [88, 100]
    vSum, vSq, vC = 112, 113, [114, 115, 116]
    vXa, vWa = [8, 9, 10, 11], [12, 13, 14, 15]
    vOX, vOW = [16, 17, 18, 19], [20, 21, 22]
    prof_start(A)
    A("""
    s_load_dwordx4 s[4:7], s[0:1], 0
    s_load_dwordx2 s[8:9], s[0:1], 72
    s_cmp_ge_u32 s2, 256
    s_cbranch_scc1 K1_end
    v_lshrrev_b32 v1, 6, v0
    v_and_b32 v2, 63, v0
    v_readfirstlane_b32 s3, v1
    """)
    A("""
    s_and_b32 s24, s2, 7
    s_lshr_b32 s25, s2, 3
    s_lshr_b32 s26, s24, 1
    s_lshl_b32 s26, s26, 2
    s_lshr_b32 s27, s25, 3
    s_add_u32 s26, s26, s27
    s_and_b32 s27, s24, 1
    s_lshl_b32 s27, s27, 3
    s_and_b32 s28, s25, 7
    s_add_u32 s27, s27, s28
    s_lshl_b32 s28, s26, 2
    s_add_u32 s28, s28, s3
    """)
    A("""
    v_lshrrev_b32 v3, 3, v2
    v_lshrrev_b32 v4, 4, v2
    v_and_b32 v5, 7, v2
    """)
    for i in range(4):
        A(f"v_add_u32 v6, {4*i}, v4")
        A(f"v_and_b32 v6, 7, v6")
        A(f"v_xor_b32 v6, v6, v5")
        A(f"v_lshlrev_b32 v6, 4, v6")
        A(f"v_lshl_add_u32 v6, v3, 10, v6")
        A(f"v_add_u32 v{vOX[i]}, {7*1024*i}, v6")
    for i in range(3):
        A(f"v_add_u32 v6, {64*i}, v2")
        A(f"v_mul_u32_u24 v7, 171, v6")
        A(f"v_lshrrev_b32 v7, 11, v7")
        A(f"v_mul_u32_u24 v23, 12, v7")
        A(f"v_sub_u32 v6, v6, v23")
        A(f"v_mul_u32_u24 v7, 3072, v7")
        A(f"v_lshrrev_b32 v23, 2, v6")
        A(f"v_lshl_add_u32 v7, v23, 10, v7")
        A(f"v_and_b32 v6, 3, v6")
        A(f"v_lshl_add_u32 v7, v6, 4, v7")
        A(f"v_subrev_u32 v{vOW[i]}, {1024*i}, v7")
    A(f"""
    s_lshl_b32 s30, s28, 15
    s_mul_i32 s31, s3, {16*3072}
    s_lshl_b32 s32, s27, 6
    s_add_u32 s31, s31, s32
    s_mul_i32 s33, s3, {NS*4096}
    s_mul_i32 s34, s3, 3072
    s_add_u32 s34, s34, {WREG}
    s_waitcnt lgkmcnt(0)
    """)
    srd(A, 12, 4, 5, 2048 * 1024)
    srd(A, 16, 6, 7, 512 * 3072)
    srd(A, 20, 8, 9, WS_BYTES)
    def dma(c):
        L = []
        sl = c % NS
        L.append(f"s_add_u32 m0, s33, {sl*4096}")
        for i in range(4):
            L.append(f"buffer_load_dwordx4 v{vOX[i]}, s[12:15], s30 offen offset:{i*1024} lds")
        L.append(f"s_add_u32 m0, s34, {sl*12288}")
        L.append(f"s_add_u32 s30, s30, 128")
        for i in range(3):
            L.append(f"buffer_load_dwordx4 v{vOW[i]}, s[16:19], s31 offen offset:{i*1024} lds")
        L.append(f"s_add_u32 s31, s31, {64*3072}")
        return L
    for c in range(NS):
        for l in dma(c):
            A(l)
    A(f"""
    v_and_b32 v3, 31, v2
    v_lshrrev_b32 v4, 5, v2
    v_bfe_u32 v5, v2, 1, 3
    v_bfe_u32 v5, v3, 1, 3
    v_lshlrev_b32 v6, 7, v3
    v_add_u32 v6, s33, v6
    v_bfe_u32 v7, v2, 2, 2
    v_lshl_add_u32 v7, v4, 3, v7
    v_mul_u32_u24 v7, 192, v7
    v_bfe_u32 v23, v2, 4, 1
    v_lshl_add_u32 v7, v23, 5, v7
    v_and_b32 v23, 3, v2
    v_lshl_add_u32 v7, v23, 3, v7
    v_add_u32 v7, {WREG}, v7
    """)
    for i in range(4):
        A(f"s_add_u32 s35, s3, {i}")
        A(f"s_and_b32 s35, s35, 3")
        A(f"s_lshl_b32 s36, s35, 1")
        A(f"v_add_u32 v23, s36, v4")
        A(f"v_xor_b32 v23, v23, v5")
        A(f"v_lshl_add_u32 v{vXa[i]}, v23, 4, v6")
        A(f"s_mul_i32 s36, s35, 3072")
        A(f"v_add_u32 v{vWa[i]}, s36, v7")
    A(f"s_mov_b32 s36, {ONES}")
    A(f"s_mov_b32 s37, {PERMHI}")
    for r in list(range(accQ, accQ + 48)) + [vSum, vSq] + vC:
        A(f"v_mov_b32 v{r}, 0")
    def reads(c, i, b):
        sl = c % NS
        L = [f"ds_read_b128 v[{XB[b]}:{XB[b]+3}], v{vXa[i]} offset:{sl*4096}"]
        for seg in range(3):
            for jj in range(2):
                r = WB[b] + 4 * seg + 2 * jj
                L.append(f"ds_read_b64_tr_b16 v[{r}:{r+1}], v{vWa[i]} offset:{sl*12288+jj*768+seg*64}")
        return L
    def compute(i, b, extra):
        X = f"v[{XB[b]}:{XB[b]+3}]"
        W = [f"v[{WB[b]+4*s}:{WB[b]+4*s+3}]" for s in range(3)]
        M = [f"v_mfma_f32_32x32x16_bf16 v[{accQ}:{accQ+15}], {W[0]}, {X}, v[{accQ}:{accQ+15}]",
             f"v_mfma_f32_32x32x16_bf16 v[{accK}:{accK+15}], {W[1]}, {X}, v[{accK}:{accK+15}]",
             f"v_mfma_f32_32x32x16_bf16 v[{accV}:{accV+15}], {X}, {W[2]}, v[{accV}:{accV+15}]"]
        n = len(extra)
        per = [(n + 2) // 3, (n + 1) // 3, n // 3]
        p = 0
        for m in range(3):
            A(M[m])
            for l in extra[p:p + per[m]]:
                A(l)
            p += per[m]
        for d in range(4):
            A(f"v_dot2c_f32_bf16 v{vSum}, s36, v{XB[b]+d}")
            A(f"v_dot2c_f32_bf16 v{vSq}, v{XB[b]+d}, v{XB[b]+d}")
        if i == 0:
            for d in range(4):
                for s in range(3):
                    A(f"v_dot2c_f32_bf16 v{vC[s]}, s36, v{WB[b]+4*s+d}")
    vm = {0: 28, 1: 21, 2: 21, 3: 21, 4: 21, 5: 14, 6: 7, 7: 0}
    prof_mark(A, 0)
    A(f"s_waitcnt vmcnt({vm[0]})")
    A("s_barrier")
    prof_mark(A, 1)
    for l in reads(0, 0, 0):
        A(l)
    step = 0
    for c in range(8):
        for i in range(4):
            b = step & 1
            A("s_waitcnt lgkmcnt(0)")
            extra = []
            if i < 3:
                extra += reads(c, i + 1, b ^ 1)
            elif c < 7:
                A(f"s_waitcnt vmcnt({vm[c+1]})")
                A("s_barrier")
                extra += reads(c + 1, 0, b ^ 1)
                if 1 <= c + 1 <= 3:
                    extra += dma(c + 1 + NS - 1)
            compute(i, b, extra)
            step += 1
        if c in (1, 4):
            prof_mark(A, 2 if c == 1 else 3)
    prof_mark(A, 4)
    halfsum(A, [vSum, vSq] + vC, 80)
    A(f"""
    v_lshlrev_b32 v88, 4, v3
    v_add_u32 v88, {CSX}, v88
    s_lshl_b32 s35, s3, 2
    v_add_u32 v89, s35, v88
    """)
    for s in range(3):
        A(f"ds_write_b32 v89, v{vC[s]} offset:{512*s}")
    A(f"""
    v_mul_f32 v{vSum}, {1.0/512}, v{vSum}
    v_mul_f32 v{vSq}, {1.0/512}, v{vSq}
    v_fma_f32 v{vSq}, -v{vSum}, v{vSum}, v{vSq}
    v_max_f32 v{vSq}, 0, v{vSq}
    v_add_f32 v{vSq}, 0x3727c5ac, v{vSq}
    v_rsq_f32 v{vSq}, v{vSq}
    v_lshlrev_b32 v90, 2, v3
    v_add_u32 v90, s33, v90
    v_lshlrev_b32 v91, 4, v4
    v_add_u32 v91, s33, v91
    v_cmp_eq_u32 vcc, 0, v4
    ds_write_b32 v90, v{vSq}
    v_cndmask_b32 v{vSum}, 0, v{vSum}, vcc
    v_sub_f32 v{vSum}, 0, v{vSum}
    s_waitcnt lgkmcnt(0)
    s_barrier
    """)
    for s in range(3):
        A(f"ds_read_b128 v[{96+4*s}:{99+4*s}], v88 offset:{512*s}")
    for g in range(4):
        A(f"ds_read_b128 v[{120+4*g}:{123+4*g}], v91 offset:{32*g}")
    split3(A, vSum, 80, 81, 82)
    pack_m(A, 84, 80, 81, 82, 37)
    for s in range(3):
        A(f"s_waitcnt lgkmcnt({6-s})")
        r = 96 + 4 * s
        A(f"v_add_f32 v{r}, v{r}, v{r+1}")
        A(f"v_add_f32 v{r+2}, v{r+2}, v{r+3}")
        A(f"v_add_f32 v{r}, v{r}, v{r+2}")
        split3(A, r, 80, 81, 82)
        pack_c(A, r, 80, 81, 82, 37)
    A(f"v_mfma_f32_32x32x16_bf16 v[{accQ}:{accQ+15}], v[96:99], v[84:87], v[{accQ}:{accQ+15}]")
    A(f"v_mfma_f32_32x32x16_bf16 v[{accK}:{accK+15}], v[100:103], v[84:87], v[{accK}:{accK+15}]")
    A(f"v_mfma_f32_32x32x16_bf16 v[{accV}:{accV+15}], v[84:87], v[104:107], v[{accV}:{accV+15}]")
    A(f"""
    v_mul_f32 v{vSum}, {0.25*1.4426950408889634}, v{vSq}
    v_lshlrev_b32 v88, 4, v2
    v_and_b32 v89, 15, v2
    v_lshl_add_u32 v89, v4, 4, v89
    v_lshlrev_b32 v89, 5, v89
    v_bfe_u32 v90, v2, 4, 1
    v_lshl_add_u32 v89, v90, 17, v89
    s_lshl_b32 s38, s27, 7
    s_add_u32 s38, s38, s28
    s_lshl_b32 s39, s38, 10
    s_add_u32 s40, s39, 65536
    s_lshl_b32 s41, s38, 11
    s_add_u32 s41, s41, {KV}
    s_add_u32 s42, s41, 131072
    s_waitcnt lgkmcnt(0)
    """)
    prof_mark(A, 5)
    def scale_store(acc, mulf, stores):
        for r in range(16):
            A(f"v_mul_f32 v{acc+r}, v{mulf(r)}, v{acc+r}")
        for r in range(8):
            A(f"v_cvt_pk_bf16_f32 v{acc+r}, v{acc+2*r}, v{acc+2*r+1}")
        for e in range(2):
            A(stores[e].format(d=f"v[{acc+4*e}:{acc+4*e+3}]"))
    scale_store(accQ, lambda r: vSum, ["buffer_store_dwordx4 {d}, v88, s[20:23], s39 offen", "buffer_store_dwordx4 {d}, v88, s[20:23], s40 offen"])
    scale_store(accK, lambda r: vSq, ["buffer_store_dwordx4 {d}, v88, s[20:23], s41 offen", "buffer_store_dwordx4 {d}, v88, s[20:23], s42 offen"])
    scale_store(accV, lambda r: 120 + r, ["buffer_store_dwordx4 {d}, v89, s[20:23], s41 offen offset:1024", "buffer_store_dwordx4 {d}, v89, s[20:23], s41 offen offset:1040"])
    prof_end(A, 1, 4)
    A.label("K1_end")
    A("s_endpgm")
    return ("k1_kernel", A.finish("k1"), 136, 0, 256, LDS)

HEADER = open('sequential_preLN__softmax_full_mha__glu_gated_swiglu__prompt.s.ref').read().split('; Override')[0]

def build(kernels, path):
    s = HEADER
    for (name, body, vg, ag, blk, lds) in kernels:
        s += f"; @launch kernel={name} grid=(256,1,1) block=({blk},1,1) lds={lds}\n"
    s += '.amdgcn_target "amdgcn-amd-amdhsa--gfx950"\n'
    seen = set()
    for (name, body, vg, ag, blk, lds) in kernels:
        if name in seen:
            continue
        seen.add(name)
        s += kernel_text(name, body, vg, ag)
    open(path, 'w').write(s)

if __name__ == '__main__':
    import kern2
    ks = [k0(), k1()] + kern2.all_kernels()
    build(ks, sys.argv[1] if len(sys.argv) > 1 else 'sequential_preLN__softmax_full_mha__glu_gated_swiglu__prompt.s')
```

```python
import re

TRANS = ('v_exp_f32', 'v_log_f32', 'v_rcp_f32', 'v_rsq_f32', 'v_sqrt_f32', 'v_sin_f32', 'v_cos_f32',
         'v_exp_f16', 'v_rcp_f16', 'v_rcp_iflag_f32')

def _regs(tok):
    tok = tok.strip()
    tok = tok.lstrip('-').strip('|')
    if tok.startswith('abs(') or tok.startswith('neg('):
        tok = tok[4:-1]
    m = re.fullmatch(r'([vas])(\d+)', tok)
    if m:
        return [(m.group(1), int(m.group(2)))]
    m = re.fullmatch(r'([vas])\[(\d+):(\d+)\]', tok)
    if m:
        return [(m.group(1), i) for i in range(int(m.group(2)), int(m.group(3)) + 1)]
    if tok == 'vcc':
        return [('s', 106), ('s', 107)]
    if tok == 'vcc_lo':
        return [('s', 106)]
    if tok == 'vcc_hi':
        return [('s', 107)]
    if tok == 'exec':
        return [('s', 126), ('s', 127)]
    if tok == 'm0':
        return [('s', 124)]
    return []

class Ins:
    __slots__ = ('text', 'op', 'dst', 'src', 'kind', 'states', 'srcC', 'passes', 'label', 'target', 'sdwa')
    def __init__(self, text):
        self.text = text
        self.label = None
        self.target = None
        self.dst = []
        self.src = []
        self.srcC = []
        self.passes = 0
        self.states = 1
        self.sdwa = False
        t = text.split(';')[0].split('//')[0].strip()
        if not t:
            self.op = ''
            self.kind = 'none'
            self.states = 0
            return
        if t.endswith(':'):
            self.op = ''
            self.kind = 'label'
            self.label = t[:-1]
            self.states = 0
            return
        if t.startswith('.'):
            self.op = t
            self.kind = 'none'
            self.states = 0
            return
        parts = t.split(None, 1)
        op = parts[0]
        self.op = op
        rest = parts[1] if len(parts) > 1 else ''
        ops = [o.strip() for o in rest.split(',')] if rest else []
        mods = ''
        if ops:
            fixed = []
            depth = 0
            cur = ''
            for ch in rest:
                if ch == '[':
                    depth += 1
                if ch == ']':
                    depth -= 1
                if ch == ',' and depth == 0:
                    fixed.append(cur.strip())
                    cur = ''
                else:
                    cur += ch
            fixed.append(cur.strip())
            last = fixed[-1].split(None, 1)
            if len(last) > 1:
                fixed[-1] = last[0]
                mods = last[1]
            ops = fixed
        R = [_regs(o) for o in ops]
        base = re.sub(r'_(e32|e64|sdwa|dpp)$', '', op)
        if op == 's_nop':
            self.kind = 'salu'
            self.states = int(ops[0], 0) + 1
        elif op.startswith('s_cbranch') or op == 's_branch':
            self.kind = 'branch'
            self.target = ops[0]
        elif op.startswith('s_'):
            self.kind = 'salu'
            if op.startswith('s_cmp') or op.startswith('s_waitcnt') or op in ('s_barrier', 's_endpgm', 's_setprio', 's_sleep') or op.startswith('s_bitcmp'):
                for r in R:
                    self.src += r
            else:
                if R:
                    self.dst = R[0]
                for r in R[1:]:
                    self.src += r
                if 'saveexec' in op:
                    self.dst = self.dst + [('s', 126), ('s', 127)]
        elif op.startswith('v_mfma'):
            self.kind = 'mfma'
            self.dst = R[0]
            self.src = R[1] + R[2]
            self.srcC = R[3]
            self.passes = 8 if '32x32' in op else 4
        elif op.startswith('v_'):
            self.kind = 'valu'
            if base.startswith('v_permlane') and 'swap' in base:
                self.dst = R[0] + R[1]
                self.src = R[0] + R[1]
            elif base.startswith('v_cmpx'):
                self.dst = [('s', 126), ('s', 127)]
                for r in R:
                    self.src += r
            elif base in ('v_add_co_u32', 'v_sub_co_u32', 'v_addc_co_u32', 'v_subb_co_u32', 'v_subrev_co_u32'):
                self.dst = R[0] + R[1]
                for r in R[2:]:
                    self.src += r
            else:
                self.dst = R[0]
                for r in R[1:]:
                    self.src += r
                if base in ('v_fmac_f32', 'v_dot2c_f32_bf16', 'v_mac_f32', 'v_pk_fmac_f16', 'v_writelane_b32') or 'UNUSED_PRESERVE' in mods:
                    self.src += R[0]
                if base == 'v_cndmask_b32' and len(ops) == 3:
                    self.src += [('s', 106), ('s', 107)]
            if 'dst_sel' in mods and 'dst_sel:DWORD' not in mods:
                self.sdwa = True
            if 'op_sel' in mods and not base.startswith('v_pk') and not base.startswith('v_dot2'):
                self.sdwa = True
        elif op.startswith('ds_'):
            self.kind = 'ds'
            if op.startswith('ds_read') or op.startswith('ds_bpermute') or op.startswith('ds_permute') or op.startswith('ds_swizzle') or '_rtn' in op:
                self.dst = R[0]
                for r in R[1:]:
                    self.src += r
            else:
                for r in R:
                    self.src += r
        elif op.startswith('buffer_') or op.startswith('global_') or op.startswith('flat_'):
            self.kind = 'vmem'
            lds = re.search(r'\blds\b', mods) is not None or '_lds_' in op
            if lds:
                self.kind = 'vmem_lds'
                for r in R:
                    self.src += r
                self.src += [('s', 124)]
            elif '_load' in op:
                self.dst = R[0]
                for r in R[1:]:
                    self.src += r
            elif 'atomic' in op and re.search(r'\bsc0\b', mods):
                self.dst = R[0]
                for r in R:
                    self.src += r
            elif op in ('buffer_wbl2', 'buffer_inv'):
                pass
            else:
                for r in R:
                    self.src += r
                if re.search(r'x[34]$', op):
                    self.kind = 'vmem_wstore'
                    self.srcC = R[0] if op.startswith('buffer_') else R[1]
        else:
            raise ValueError('unknown instruction: ' + text)

def _ov(a, b):
    return bool(set(a) & set(b))

def need(prod, cons):
    n = 0
    pk, ck = prod.kind, cons.kind
    isv = lambda L: [r for r in L if r[0] in 'va']
    iss = lambda L: [r for r in L if r[0] == 's']
    cbase = re.sub(r'_(e32|e64|sdwa|dpp)$', '', cons.op)
    pbase = re.sub(r'_(e32|e64|sdwa|dpp)$', '', prod.op)
    if pk == 'valu':
        pv = isv(prod.dst)
        ps = iss(prod.dst)
        isdot = pbase.startswith('v_dot')
        if ck == 'mfma' and _ov(pv, cons.src + cons.srcC):
            n = max(n, 3 if isdot else 2)
        if ck == 'mfma' and ('s', 126) in ps:
            n = max(n, 4)
        if isdot:
            if ck in ('valu', 'ds', 'vmem', 'vmem_wstore', 'vmem_lds', 'mfma') and _ov(pv, cons.src + cons.dst + cons.srcC):
                if cbase == pbase:
                    ab = cons.src[:]
                    if pbase == 'v_dot2c_f32_bf16':
                        ab = [r for r in cons.src if r not in cons.dst]
                    else:
                        ab = cons.src[:-1]
                    if _ov(pv, ab):
                        n = max(n, 3)
                else:
                    n = max(n, 3)
        if pbase in TRANS and ck == 'valu' and cbase not in TRANS and _ov(pv, cons.src):
            n = max(n, 1)
        if pbase in TRANS and ck in ('ds', 'vmem', 'vmem_wstore') and _ov(pv, cons.src):
            n = max(n, 1)
        if prod.sdwa and ck == 'valu' and _ov(pv, cons.src + cons.dst):
            n = max(n, 1)
        if cbase.startswith('v_permlane') and _ov(pv, cons.src):
            n = max(n, 2)
        if cbase.startswith('v_permlane') and ('s', 126) in ps:
            n = max(n, 4)
        if cbase in ('v_readfirstlane_b32', 'v_readlane_b32') and _ov(pv, cons.src):
            n = max(n, 1)
        if cbase in ('v_readfirstlane_b32', 'v_readlane_b32', 'v_writelane_b32') and (('s', 126) in ps or _ov(ps, cons.src)):
            n = max(n, 4)
        if cons.op.endswith('_dpp') or ' row_' in cons.text or 'quad_perm' in cons.text:
            if _ov(pv, cons.src):
                n = max(n, 2)
            if ('s', 126) in ps:
                n = max(n, 5)
        if ps:
            if ck in ('vmem', 'vmem_wstore', 'vmem_lds') and _ov(ps, cons.src):
                n = max(n, 5)
            if ck in ('valu', 'mfma') and _ov(ps, cons.src):
                n = max(n, 2)
    if pk == 'mfma':
        P = prod.passes
        tA = {4: 8, 8: 12}[P]
        tC = {4: 6, 8: 10}[P]
        if ck == 'mfma':
            if _ov(prod.dst, cons.src):
                n = max(n, tA)
            if _ov(prod.dst, cons.srcC):
                if not (prod.dst == cons.srcC and prod.passes == cons.passes):
                    n = max(n, tC)
            elif _ov(prod.dst, cons.dst):
                n = max(n, tC)
        elif ck in ('valu', 'ds', 'vmem', 'vmem_wstore', 'vmem_lds'):
            if _ov(prod.dst, cons.src + cons.dst):
                n = max(n, tA)
        if ck == 'valu' and _ov(isv(prod.srcC), cons.dst):
            n = max(n, {4: 3, 8: 7}[P])
        if ck in ('ds', 'vmem') and _ov(isv(prod.srcC), cons.dst):
            n = max(n, {4: 3, 8: 7}[P])
    if pk == 'vmem_wstore':
        if ck == 'valu' and _ov(prod.srcC, cons.dst):
            n = max(n, 2)
        elif ck in ('ds', 'vmem', 'mfma') and _ov(prod.srcC, cons.dst):
            n = max(n, 1)
    if pk == 'salu' and ('s', 124) in prod.dst and ck == 'vmem_lds':
        n = max(n, 1)
    return n

MAXW = 12

class Asm:
    def __init__(self):
        self.lines = []
    def __call__(self, s):
        for l in s.split('\n'):
            l = l.strip()
            if l:
                self.lines.append(l)
    def label(self, name):
        self.lines.append(name + ':')
    def finish(self, verbose_name=None):
        ins = [Ins(l) for l in self.lines]
        out = []
        nins = 0
        for c in ins:
            if c.states and c.kind not in ('none', 'label'):
                dist = 0
                req = 0
                for p in reversed(out):
                    if dist >= MAXW:
                        break
                    if p.kind == 'branch' and p.op == 's_branch':
                        break
                    if p.op == 's_endpgm':
                        break
                    k = need(p, c)
                    if k - dist > req:
                        req = k - dist
                    dist += p.states
                if req > 0:
                    nins += req
                    out.append(Ins(f's_nop {req-1}'))
            out.append(c)
        labels = {c.label: i for i, c in enumerate(out) if c.kind == 'label'}
        for i, b in enumerate(out):
            if b.kind == 'branch':
                t = labels[b.target]
                d2 = 0
                j = t
                while j < len(out) and d2 < MAXW:
                    c = out[j]
                    if c.states:
                        dist = d2 + 1
                        k = i - 1
                        while k >= 0 and dist < MAXW:
                            p = out[k]
                            if p.kind == 'branch' and p.op == 's_branch':
                                break
                            nd = need(p, c)
                            if nd > dist:
                                raise RuntimeError(f'hazard across branch {b.text}: {p.text} -> {c.text} need {nd} have {dist}')
                            dist += p.states
                            k -= 1
                        d2 += c.states
                        if c.op in ('s_branch', 's_endpgm'):
                            break
                    j += 1
        if verbose_name:
            print(f'{verbose_name}: {sum(1 for c in out if c.states)} instructions, {nins} wait states inserted')
        txt = []
        for c in out:
            if c.kind == 'label' or c.op.startswith('.'):
                txt.append(c.text)
            else:
                txt.append('    ' + c.text)
        return '\n'.join(txt) + '\n'

def kernel_text(name, body, vgpr, agpr=0, sgpr=102):
    accum = (vgpr + 3) // 4 * 4
    total = accum + agpr
    return f'''.text
.globl {name}
.p2align 8
.type {name},@function
{name}:
{body}.section .rodata,"a"
.p2align 6
.amdhsa_kernel {name}
  .amdhsa_next_free_vgpr {total}
  .amdhsa_next_free_sgpr {sgpr}
  .amdhsa_accum_offset {accum}
  .amdhsa_group_segment_fixed_size 0
  .amdhsa_kernarg_size 80
  .amdhsa_user_sgpr_count 2
  .amdhsa_user_sgpr_kernarg_segment_ptr 1
  .amdhsa_system_sgpr_workgroup_id_x 1
.end_amdhsa_kernel
'''


import os
PROF = int(os.environ.get("PROF", "0"))
PROFBASE = 0x1C00000
MARKS = list(range(68, 84)) + list(range(96, 102))
NMARK = len(MARKS)

def prof_start(A):
    if PROF:
        A("s_memrealtime s[88:89]")
        A("s_memtime s[90:91]")
        A("s_load_dwordx2 s[92:93], s[0:1], 72")
        for r in MARKS:
            A(f"s_mov_b32 s{r}, 0")

_auto = [0, []]
def prof_mark(A, i=None, wait="", name=None):
    if PROF:
        if i is None:
            i = _auto[0]; _auto[0] += 1; _auto[1].append(name or str(i))
        if wait:
            A(wait)
        A("s_memtime s[84:85]")
        A("s_waitcnt lgkmcnt(0)")
        A(f"s_sub_u32 s{MARKS[i]}, s84, s90")

def prof_end(A, kidx, nwaves):
    if PROF:
        A("s_waitcnt vmcnt(0) lgkmcnt(0)")
        A("s_memrealtime s[84:85]")
        A("s_memtime s[86:87]")
        A("s_mov_b32 s94, 0x2000000")
        A("s_mov_b32 s95, 0x20000")
        A("s_waitcnt lgkmcnt(0)")
        A("s_sub_u32 s86, s86, s90")
        A(f"s_mul_i32 s85, s2, {nwaves}")
        A("s_add_u32 s85, s85, s3")
        A("s_lshl_b32 s85, s85, 7")
        A(f"s_add_u32 s85, s85, {PROFBASE + kidx * 0x40000}")
        A("s_mov_b64 exec, 1")
        A("v_mov_b32 v1, 0")
        regs = [88, 84, 86, 86] + MARKS + [86, 86]
        for i, r in enumerate(regs):
            A(f"v_mov_b32 v{4+i}, s{r}")
        for i in range(len(regs) // 4):
            A(f"buffer_store_dwordx4 v[{4+4*i}:{7+4*i}], v1, s[92:95], s85 offen offset:{16*i}")
        A("; MARKNAMES " + " ".join(_auto[1]))
```

```python
from asm import *
from layout import *
import os
from gen import srd, halfsum, split3, pack_m, pack_c, ONES, PERMHI

TS = 2080

def k2(nq=2):
    A = Asm()
    nw = 8 // nq
    LDS = 66 * TS
    Q = [8, 12]
    KB = [16, 20]
    VB = [24, 32]
    N = [40, 56]
    S = [72, 88]
    P = [104, 112]
    O = [120, 136]
    if nq == 1:
        Q = [8]; N = [40]; S = [56, 72]; P = [88, 96]; O = [104]
    NV = O[-1] + 16
    vKa, vVa = 4, 5
    prof_start(A)
    A("""
    s_load_dwordx2 s[8:9], s[0:1], 72
    s_cmp_ge_u32 s2, 256
    s_cbranch_scc1 K2_end
    v_lshrrev_b32 v1, 6, v0
    v_and_b32 v2, 63, v0
    v_readfirstlane_b32 s3, v1
    v_lshlrev_b32 v3, 4, v2
    s_and_b32 s24, s2, 7
    s_lshr_b32 s25, s2, 3
    s_lshl_b32 s26, s24, 2
    s_lshr_b32 s27, s25, 3
    s_add_u32 s26, s26, s27
    s_and_b32 s27, s25, 7
    """)
    A(f"""
    s_lshl_b32 s28, s27, 3
    s_mul_i32 s29, s3, {nq}
    s_add_u32 s28, s28, s29
    s_lshl_b32 s30, s26, 17
    s_add_u32 s30, s30, {KV}
    s_lshl_b32 s31, s3, 11
    s_add_u32 s30, s30, s31
    s_mul_i32 s31, s3, {TS}
    s_lshl_b32 s32, s26, 6
    s_add_u32 s32, s32, s28
    s_lshl_b32 s32, s32, 10
    s_waitcnt lgkmcnt(0)
    """)
    srd(A, 20, 8, 9, WS_BYTES)
    ntl = 64 // nw
    def dma_tile():
        A("s_mov_b32 m0, s31")
        A(f"s_add_u32 s31, s31, {nw*TS}")
        A("buffer_load_dwordx4 v3, s[20:23], s30 offen lds")
        A("buffer_load_dwordx4 v3, s[20:23], s30 offen offset:1024 lds")
        A(f"s_add_u32 s30, s30, {nw*2048}")
    first = 8 // nw
    for t in range(first):
        dma_tile()
    for q in range(nq):
        A(f"buffer_load_dwordx4 v[{Q[q]}:{Q[q]+3}], v3, s[20:23], s32 offen offset:{1024*q}")
    for t in range(ntl - first):
        dma_tile()
    A(f"""
    v_mov_b32 v6, {ONES}
    v_mov_b32 v7, {ONES}
    v_mul_u32_u24 v{KB[0]}, {TS}, v2
    v_mov_b32 v{vKa}, v3
    v_and_b32 v{KB[0]+1}, 15, v2
    v_lshrrev_b32 v{KB[0]+2}, 5, v2
    v_lshl_add_u32 v{KB[0]+1}, v{KB[0]+2}, 4, v{KB[0]+1}
    v_lshlrev_b32 v{KB[0]+1}, 5, v{KB[0]+1}
    v_and_b32 v{KB[0]+2}, 16, v2
    v_cmp_eq_u32 vcc, 0, v{KB[0]+2}
    v_mov_b32 v{KB[0]+3}, 1024
    v_cndmask_b32 v{vVa}, v{KB[0]+3}, v{KB[0]+1}, vcc
    v_add_u32 v{vVa}, 1024, v{vVa}
    """)
    for i in range(4):
        A(f"ds_write_b64 v{KB[0]}, v[6:7] offset:{2048+8*i}")
    A(f"s_mov_b32 s34, 1")
    A(f"s_mov_b32 s36, 0")
    prof_mark(A, 0)
    A(f"s_waitcnt vmcnt({2*(ntl-first)}) lgkmcnt(0)")
    A("s_barrier")
    prof_mark(A, 1)
    A(f"ds_read_b128 v[{KB[0]}:{KB[0]+3}], v{vKa}")
    A("s_waitcnt lgkmcnt(0)")
    for q in range(nq):
        A(f"v_mfma_f32_32x32x16_bf16 v[{S[q]}:{S[q]+15}], v[{KB[0]}:{KB[0]+3}], v[{Q[q]}:{Q[q]+3}], 0")
    for q in range(nq):
        s = S[q]
        A(f"v_max3_f32 v{6+q}, v{s}, v{s+1}, v{s+2}")
        for r in range(3, 15, 2):
            A(f"v_max3_f32 v{6+q}, v{6+q}, v{s+r}, v{s+r+1}")
        A(f"v_max_f32 v{6+q}, v{6+q}, v{s+15}")
    A.label("K2_setmax")
    halfsum(A, [6 + q for q in range(nq)], P[0], op="v_max_f32")
    for q in range(nq):
        for r in range(16):
            A(f"v_sub_f32 v{N[q]+r}, 0, v{6+q}")
        for r in range(16):
            A(f"v_mov_b32 v{O[q]+r}, 0")
    for r in range(8):
        A(f"v_mov_b32 v{P[1]+r}, 0")
        A(f"v_mov_b32 v{VB[1]+r}, 0")
    for r in range(12, 16):
        A(f"v_mov_b32 v{S[1]+r}, 0")
    kahead = 2 if nq == 1 else 1
    A(f"ds_read_b128 v[{KB[0]}:{KB[0]+3}], v{vKa}")
    if kahead == 2:
        A(f"ds_read_b128 v[{KB[1]}:{KB[1]+3}], v{vKa} offset:{TS}")
    A("s_mov_b32 s35, 0")
    A("s_waitcnt lgkmcnt(0)")
    A(f"v_mfma_f32_32x32x16_bf16 v[{S[0]}:{S[0]+15}], v[{KB[0]}:{KB[0]+3}], v[{Q[0]}:{Q[0]+3}], v[{N[0]}:{N[0]+15}]")
    prof_mark(A, 2)
    A("s_nop 7")
    A("s_nop 7")
    A(".p2align 6")
    A.label("K2_loop")
    T = 8
    for u in range(T * nq):
        kt, q = u // nq, u % nq
        un = u + 1
        ktn, qn = un // nq, un % nq
        up = u - 1
        ktp, qp = (up // nq), up % nq
        s = S[u & 1]; p = P[u & 1]
        sn = S[un & 1]; pp = P[up & 1]
        M = [f"v_mfma_f32_32x32x16_bf16 v[{sn}:{sn+15}], v[{KB[ktn&1]}:{KB[ktn&1]+3}], v[{Q[qn]}:{Q[qn]+3}], v[{N[qn]}:{N[qn]+15}]",
             f"v_mfma_f32_32x32x16_bf16 v[{O[qp]}:{O[qp]+15}], v[{VB[ktp&1]}:{VB[ktp&1]+3}], v[{pp}:{pp+3}], v[{O[qp]}:{O[qp]+15}]",
             f"v_mfma_f32_32x32x16_bf16 v[{O[qp]}:{O[qp]+15}], v[{VB[ktp&1]+4}:{VB[ktp&1]+7}], v[{pp+4}:{pp+7}], v[{O[qp]}:{O[qp]+15}]"]
        e = lambda i: f"v_exp_f32 v{s+i}, v{s+i}"
        c = lambda i: f"v_cvt_pk_bf16_f32 v{p+i}, v{s+2*i}, v{s+2*i+1}"
        rd = []
        if q == 0:
            kk = kt + kahead
            rd = [f"ds_read_b128 v[{KB[kk&1]}:{KB[kk&1]+3}], v{vKa} offset:{kk*TS}",
                  f"ds_read_b128 v[{VB[kt&1]}:{VB[kt&1]+3}], v{vVa} offset:{kt*TS}",
                  f"ds_read_b128 v[{VB[kt&1]+4}:{VB[kt&1]+7}], v{vVa} offset:{kt*TS+16}"]
        wait_needed = (nq == 1) or (q == 1)
        VAR = int(os.environ.get("K2VAR", "1"))
        if VAR == 0:
            seq = [e(0)]
            if wait_needed:
                seq.append("s_waitcnt lgkmcnt(0)")
            if q == 0 and kt + kahead == T:
                seq += ["BARRIER"]
            seq += [e(1)] + rd[0:1] + [e(2)] + rd[1:2] + [e(3)] + rd[2:3]
            seq += [c(0), M[0], e(4), e(5), c(1), e(6), e(7), c(2), M[1], e(8), e(9), c(3)]
            seq += [e(10), e(11), c(4), M[2], e(12), e(13), c(5), e(14), e(15), c(6), c(7)]
        else:
            cp = lambda i: f"v_cvt_pk_bf16_f32 v{pp+i}, v{sn+2*i}, v{sn+2*i+1}"
            seq = [e(0)]
            if wait_needed:
                seq[0] = seq[0].replace("v_exp_f32", "v_exp_f32_e64")
                seq += ["s_waitcnt lgkmcnt(0)", e(1)]
            else:
                seq += [e(1)]
            if q == 0 and kt + kahead == T:
                seq += ["BARRIER"]
            seq += rd[0:1] + [cp(6), e(2), e(3)] + rd[1:2] + [cp(7), c(0)] + rd[2:3]
            seq += [M[0], e(4), e(5), c(1), e(6), e(7), c(2), M[1], e(8), e(9), c(3)]
            seq += [e(10), e(11), c(4), M[2], e(12), e(13), c(5), e(14), e(15)]
        for l in seq:
            if l == "BARRIER":
                A(f"""
                s_cmp_eq_u32 s34, 0
                s_cbranch_scc1 K2_nobar
                s_waitcnt vmcnt(0)
                s_barrier
                s_mov_b32 s34, 0
                s_nop 0
                K2_nobar:
                """)
            else:
                A(l)
    A(f"""
    v_add_u32 v{vKa}, {T*TS}, v{vKa}
    v_add_u32 v{vVa}, {T*TS}, v{vVa}
    s_add_u32 s35, s35, 1
    s_cmp_lt_u32 s35, {64//T}
    s_cbranch_scc1 K2_loop
    """)
    prof_mark(A, 3)
    ul = T * nq - 1
    ql = ul % nq; ktl = ul // nq; pp = P[ul & 1]
    if int(os.environ.get("K2VAR", "1")):
        for i in (6, 7):
            A(f"v_cvt_pk_bf16_f32 v{pp+i}, v{S[ul&1]+2*i}, v{S[ul&1]+2*i+1}")
    A(f"v_mfma_f32_32x32x16_bf16 v[{O[ql]}:{O[ql]+15}], v[{VB[ktl&1]}:{VB[ktl&1]+3}], v[{pp}:{pp+3}], v[{O[ql]}:{O[ql]+15}]")
    A(f"v_mfma_f32_32x32x16_bf16 v[{O[ql]}:{O[ql]+15}], v[{VB[ktl&1]+4}:{VB[ktl&1]+7}], v[{pp+4}:{pp+7}], v[{O[ql]}:{O[ql]+15}]")
    A(f"v_subrev_u32 v{vKa}, {64*TS}, v{vKa}")
    A(f"v_subrev_u32 v{vVa}, {64*TS}, v{vVa}")
    A("s_waitcnt lgkmcnt(0)")
    A("s_mov_b32 s44, 0x7e800000")
    A("s_nop 5")
    A("s_cmp_lg_u32 s36, 0")
    A("s_cbranch_scc1 K2_fin")
    for q in range(nq):
        o = O[q]
        A(f"v_max3_f32 v{6}, |v{o}|, |v{o+1}|, |v{o+2}|" if q == 0 else f"v_max3_f32 v6, v6, |v{o}|, |v{o+1}|")
        rest = list(range(3, 8)) if q == 0 else list(range(2, 8))
        while rest:
            if len(rest) >= 2:
                A(f"v_max3_f32 v6, v6, |v{o+rest[0]}|, |v{o+rest[1]}|"); rest = rest[2:]
            else:
                A(f"v_max_f32 v6, v6, |v{o+rest[0]}|"); rest = rest[1:]
    if nq == 2:
        A(f"v_max_f32 v7, v{O[0]+8}, v{O[1]+8}")
        A(f"v_add_f32 v{P[0]}, v{O[0]+8}, v{O[1]+8}")
    else:
        A(f"v_mov_b32 v7, v{O[0]+8}")
        A(f"v_mov_b32 v{P[0]}, v{O[0]+8}")
    A(f"""
    v_cmp_gt_f32 vcc, 0x53800000, v7
    v_cmp_o_f32 s[40:41], v{P[0]}, v{P[0]}
    v_cmp_gt_f32 s[42:43], s44, v6
    s_and_b64 s[40:41], s[40:41], vcc
    s_and_b64 s[40:41], s[40:41], s[42:43]
    s_cmp_eq_u64 s[40:41], -1
    s_cbranch_scc1 K2_fin
    """)
    A("s_mov_b32 s36, 1")
    for q in range(nq):
        A(f"v_mov_b32 v{6+q}, 0xff800000")
    A(f"v_mov_b32 v{P[0]}, v{vKa}")
    A("s_mov_b32 s35, 0")
    A.label("K2_maxloop")
    A(f"ds_read_b128 v[{KB[0]}:{KB[0]+3}], v{P[0]}")
    A(f"v_add_u32 v{P[0]}, {TS}, v{P[0]}")
    A("s_waitcnt lgkmcnt(0)")
    for q in range(nq):
        A(f"v_mfma_f32_32x32x16_bf16 v[{S[q]}:{S[q]+15}], v[{KB[0]}:{KB[0]+3}], v[{Q[q]}:{Q[q]+3}], 0")
    for q in range(nq):
        for r in range(0, 16, 2):
            A(f"v_max3_f32 v{6+q}, v{6+q}, v{S[q]+r}, v{S[q]+r+1}")
    A("""
    s_add_u32 s35, s35, 1
    s_cmp_lt_u32 s35, 64
    s_cbranch_scc1 K2_maxloop
    s_branch K2_setmax
    """)
    A.label("K2_fin")
    A(f"""
    s_lshl_b32 s38, s28, 5
    s_add_u32 s38, s38, s26
    s_lshl_b32 s38, s38, 10
    s_add_u32 s38, s38, {OF}
    """)
    for q in range(nq):
        o = O[q]
        A(f"v_rcp_f32 v{6+q}, v{o+8}")
    for q in range(nq):
        o = O[q]
        for r in range(8):
            A(f"v_mul_f32 v{o+r}, v{6+q}, v{o+r}")
        for r in range(4):
            A(f"v_cvt_pk_bf16_f32 v{o+r}, v{o+2*r}, v{o+2*r+1}")
        A(f"buffer_store_dwordx4 v[{o}:{o+3}], v3, s[20:23], s38 offen")
        if q == 0 and nq == 2:
            A(f"s_add_u32 s38, s38, 32768")
    prof_end(A, 2, nw)
    A.label("K2_end")
    A("s_endpgm")
    return ("k2_kernel", A.finish("k2"), NV, 0, 64 * nw, LDS)

def all_kernels():
    import sys, os
    nq = int(os.environ.get("NQ", "2"))
    import kern3
    return [k2(nq), kern3.k3(), kern3.k4(), kern3.k5()]
```

```python
from asm import *
from layout import *
from gen import srd, halfsum, split3, pack_m, pack_c, ONES, PERMHI
import os

class VM:
    def __init__(self, A):
        self.A = A
        self.ops = []
        self.done = 0
    def issue(self, text, tag=None):
        self.A(text)
        self.ops.append(tag)
    def count(self, tag):
        idx = max(i for i, t in enumerate(self.ops) if t == tag)
        return idx
    def wait(self, tag, extra=""):
        idx = self.count(tag)
        if idx < self.done:
            if extra:
                self.A(f"s_waitcnt {extra}")
            return
        n = len(self.ops) - 1 - idx
        assert n <= 63, n
        self.A(f"s_waitcnt vmcnt({n}) {extra}")
        self.done = idx + 1

def gemm64(name, kidx, NKS, DEPTH, abase, bbase, final):
    A = Asm()
    L = name.upper()
    KW = NKS // 4
    ACC = [16 * j for j in range(4)]
    BUF0 = 24
    NB = DEPTH
    buf = lambda s, i: BUF0 + 16 * (s % NB) + 4 * i
    ACC0 = BUF0 + 16 * NB
    acc = lambda j: ACC0 + 16 * j
    NV = ACC0 + 64
    RES = 8
    prof_start(A)
    A(f"""
    s_load_dwordx2 s[8:9], s[0:1], 72
    s_load_dwordx2 s[4:5], s[0:1], {0 if final == 'h' else 56}
    s_cmp_ge_u32 s2, 256
    s_cbranch_scc1 {L}_end
    v_lshrrev_b32 v1, 6, v0
    v_and_b32 v2, 63, v0
    v_readfirstlane_b32 s3, v1
    v_lshlrev_b32 v3, 4, v2
    v_add_u32 v4, 4096, v3
    s_and_b32 s24, s2, 7
    s_lshr_b32 s25, s2, 3
    s_lshl_b32 s26, s24, 2
    s_lshr_b32 s27, s25, 3
    s_add_u32 s26, s26, s27
    s_and_b32 s27, s25, 7
    s_and_b32 s28, s3, 1
    s_lshr_b32 s29, s3, 1
    s_lshl_b32 s30, s27, 1
    s_lshl_b32 s31, s26, 1
    s_add_u32 s30, s30, s28
    s_add_u32 s31, s31, s29
    s_xor_b32 s32, s30, 1
    s_xor_b32 s33, s31, 1
    s_mul_i32 s34, s3, {KW*1024}
    s_mul_i32 s36, s30, {NKS*1024}
    s_mul_i32 s37, s31, {NKS*1024}
    s_mul_i32 s38, s32, {NKS*1024}
    s_mul_i32 s39, s33, {NKS*1024}
    s_add_u32 s35, s34, {abase}
    s_add_u32 s34, s34, {bbase}
    s_add_u32 s36, s36, s35
    s_add_u32 s37, s37, s34
    s_add_u32 s38, s38, s35
    s_add_u32 s39, s39, s34
    s_waitcnt lgkmcnt(0)
    """)
    srd(A, 20, 8, 9, WS_BYTES)
    prof_mark(A, 7)
    vm = VM(A)
    def loads(s):
        if s and s % 8 == 0:
            for i in range(4):
                A(f"s_add_u32 s{36+i}, s{36+i}, 8192")
        for i in range(4):
            vm.issue(f"buffer_load_dwordx4 v[{buf(s,i)}:{buf(s,i)+3}], v{3 + ((s>>2)&1)}, s[20:23], s{36+i} offen offset:{(s&3)*1024}", ('k', s))
    for s in range(min(NB, KW)):
        loads(s)
        if s == 0:
            prof_mark(A, 5, "s_waitcnt vmcnt(0)" if os.environ.get("PROBE") else "")
        if s == 3:
            prof_mark(A, 6, "s_waitcnt vmcnt(0)" if os.environ.get("PROBE") else "")
    srd(A, 12, 4, 5, 2048 * 1024)
    A(f"""
    v_and_b32 v5, 31, v2
    v_lshrrev_b32 v6, 5, v2
    v_lshlrev_b32 v7, 10, v5
    v_lshl_add_u32 v7, v6, 4, v7
    s_lshl_b32 s40, s31, 15
    s_lshl_b32 s41, s30, 6
    s_add_u32 s40, s40, s41
    s_lshl_b32 s42, s31, 5
    s_lshl_b32 s43, s30, 1
    s_add_u32 s42, s42, s43
    s_lshl_b32 s42, s42, 10
    s_add_u32 s42, s42, {HF}
    """)
    for j in range(1, 4):
        A(f"s_xor_b32 s44, s3, {j}")
        A(f"s_mul_i32 s44, s44, 12288")
        A(f"v_add_u32 v{16+j}, s44, v3")
    A("s_mul_i32 s44, s3, 12288")
    A("v_add_u32 v16, s44, v3")
    def resid():
        if final == 'h':
            vm.issue(f"buffer_load_dwordx4 v[{RES}:{RES+3}], v7, s[12:15], s40 offen", 'res')
            vm.issue(f"buffer_load_dwordx4 v[{RES+4}:{RES+7}], v7, s[12:15], s40 offen offset:32", 'res')
        else:
            vm.issue(f"buffer_load_dwordx4 v[{RES}:{RES+3}], v3, s[20:23], s42 offen", 'res')
            vm.issue(f"buffer_load_dwordx4 v[{RES+4}:{RES+7}], v3, s[20:23], s42 offen offset:1024", 'res')
    if NB >= KW:
        resid()
    prof_mark(A, 0)
    for s in range(KW):
        vm.wait(('k', s))
        if s == 0:
            prof_mark(A, 1)
        order = [1, 2, 3, 0] if s == KW - 1 else [0, 1, 2, 3]
        for j in order:
            n, b = j & 1, j >> 1
            W = buf(s, 2 * n); B = buf(s, 2 * b + 1)
            C = "0" if s == 0 else f"v[{acc(j)}:{acc(j)+15}]"
            A(f"v_mfma_f32_32x32x16_bf16 v[{acc(j)}:{acc(j)+15}], v[{W}:{W+3}], v[{B}:{B+3}], {C}")
        if s >= 1 and s - 1 + NB < KW:
            loads(s - 1 + NB)
            if s - 1 + NB == KW - 1:
                resid()
    prof_mark(A, 2)
    for j in range(1, 4):
        for r in range(4):
            A(f"ds_write_b128 v{16+j}, v[{acc(j)+4*r}:{acc(j)+4*r+3}] offset:{(j-1)*4096+r*1024}")
    vm.wait('res')
    if final == 'h':
        for p in (0, 1, 4, 5):
            A(f"v_permlane32_swap_b32 v{RES+p}, v{RES+p+2}")
    U = BUF0
    for d in range(8):
        A(f"v_lshlrev_b32 v{U+2*d}, 16, v{RES+d}")
        A(f"v_and_b32 v{U+2*d+1}, 0xffff0000, v{RES+d}")
    for r in range(16):
        A(f"v_add_f32 v{acc(0)+r}, v{acc(0)+r}, v{U+r}")
    A("s_waitcnt lgkmcnt(0)")
    A("s_barrier")
    for j in range(1, 4):
        for r in range(4):
            A(f"ds_read_b128 v[{acc(j)+4*r}:{acc(j)+4*r+3}], v16 offset:{(j-1)*4096+r*1024}")
    for j in range(1, 4):
        for r in range(4):
            A(f"s_waitcnt lgkmcnt({11-((j-1)*4+r)})")
            for e in range(4):
                A(f"v_add_f32 v{acc(0)+4*r+e}, v{acc(0)+4*r+e}, v{acc(j)+4*r+e}")
    prof_mark(A, 3)
    a0 = acc(0)
    P = acc(1)
    for d in range(8):
        A(f"v_cvt_pk_bf16_f32 v{P+d}, v{a0+2*d}, v{a0+2*d+1}")
    if final == 'h':
        A(f"buffer_store_dwordx4 v[{P}:{P+3}], v3, s[20:23], s42 offen")
        A(f"buffer_store_dwordx4 v[{P+4}:{P+7}], v3, s[20:23], s42 offen offset:1024")
        A(f"v_add_f32 v8, v{a0}, v{a0+1}")
        A(f"v_mul_f32 v9, v{a0}, v{a0}")
        A(f"v_add_f32 v10, v{a0+2}, v{a0+3}")
        A(f"v_mul_f32 v11, v{a0+1}, v{a0+1}")
        for r in range(2, 16):
            A(f"v_fma_f32 v{9 + 2*(r&1)}, v{a0+r}, v{a0+r}, v{9 + 2*(r&1)}")
            if r >= 4:
                A(f"v_add_f32 v{8 + 2*(r&1)}, v{8 + 2*(r&1)}, v{a0+r}")
        A(f"""
        v_add_f32 v8, v8, v10
        v_add_f32 v9, v9, v11
        v_lshlrev_b32 v12, 7, v5
        v_lshl_add_u32 v12, v6, 2, v12
        v_permlane32_swap_b32 v8, v9
        s_lshl_b32 s44, s31, 12
        s_lshl_b32 s45, s30, 3
        s_add_u32 s44, s44, s45
        s_add_u32 s44, s44, {ST}
        v_add_f32 v8, v8, v9
        buffer_store_dword v8, v12, s[20:23], s44 offen
        """)
    else:
        for p in (0, 1, 4, 5):
            A(f"v_permlane32_swap_b32 v{P+p}, v{P+p+2}")
        A(f"buffer_store_dwordx4 v[{P}:{P+3}], v7, s[12:15], s40 offen")
        A(f"buffer_store_dwordx4 v[{P+4}:{P+7}], v7, s[12:15], s40 offen offset:32")
    prof_end(A, kidx, 4)
    A.label(f"{L}_end")
    A("s_endpgm")
    return (f"{name}_kernel", A.finish(name), NV, 0, 256, 49152)

def k3():
    return gemm64("k3", 3, 32, 8, WOF, OF, 'h')

def k5():
    return gemm64("k5", 5, 112, int(os.environ.get("K5D", "10")), W2F, GF, 'out')

def k4():
    A = Asm()
    T1 = int(os.environ.get("K4T1", "4"))
    RG = 8
    PRE = int(os.environ.get("K4PRE", "4"))
    H = 128
    ACC = [16 + 16 * i for i in range(5)]
    WB = [96, 100, 104]
    MU = 108
    CSR = [112, 116, 12, 124]
    CS = 112
    STR = 96
    vRA, vRB = 120, 121
    TMP = [122, 123]
    prof_start(A)
    A(f"""
    s_load_dwordx2 s[8:9], s[0:1], 72
    s_cmp_ge_u32 s2, 256
    s_cbranch_scc1 K4_end
    v_lshrrev_b32 v1, 6, v0
    v_and_b32 v2, 63, v0
    v_readfirstlane_b32 s3, v1
    v_lshlrev_b32 v3, 4, v2
    s_and_b32 s24, s2, 7
    s_lshr_b32 s25, s2, 3
    s_lshr_b32 s26, s24, 2
    s_lshl_b32 s26, s26, 3
    s_lshr_b32 s27, s25, 2
    s_add_u32 s26, s26, s27
    s_and_b32 s27, s24, 3
    s_lshl_b32 s27, s27, 2
    s_and_b32 s28, s25, 3
    s_add_u32 s27, s27, s28
    s_lshl_b32 s28, s26, 2
    s_add_u32 s28, s28, s3
    s_lshl_b32 s30, s28, 15
    s_add_u32 s30, s30, {HF}
    s_mul_i32 s31, s27, {7*32768}
    s_add_u32 s31, s31, {W13F}
    s_lshl_b32 s33, s3, 10
    s_waitcnt lgkmcnt(0)
    """)
    srd(A, 20, 8, 9, WS_BYTES)
    prof_mark(A, 7)
    order = [(t, ks) for ks in range(32) for t in range(T1)] + [(t, ks) for t in range(T1, 7) for ks in range(32)]
    NG = len(order) // 16
    assert T1 == 4
    vm = VM(A)
    A("s_add_u32 s34, s31, s33")
    A("s_lshl_b32 s35, s3, 12")
    A("s_add_u32 s36, s31, s35")
    for i in range(1, 4):
        A(f"v_add_u32 v{3+i}, {i*(32768-1024)}, v3")
    def dma(g):
        L = []
        L.append(("s", f"s_add_u32 m0, s35, {(g % RG)*16384}"))
        if g < 8:
            L.append(("s", f"s_add_u32 s37, s34, {g*4096}"))
            for i in range(4):
                L.append(("v", f"buffer_load_dwordx4 v{3+i}, s[20:23], s37 offen offset:{i*1024} lds", ('g', g)))
        else:
            t = T1 + (g - 8) // 2
            L.append(("s", f"s_add_u32 s37, s36, {t*32768 + ((g-8)&1)*16384}"))
            for i in range(4):
                L.append(("v", f"buffer_load_dwordx4 v3, s[20:23], s37 offen offset:{i*1024} lds", ('g', g)))
        return L
    def hload(g):
        L = [("s", f"s_add_u32 s38, s30, {g*4096}")]
        for i in range(4):
            ks = 4 * g + i
            L.append(("v", f"buffer_load_dwordx4 v[{H+4*ks}:{H+4*ks+3}], v3, s[20:23], s38 offen offset:{i*1024}", ('h', ks)))
        return L
    def emit(x):
        if x[0] == "v":
            vm.issue(x[1], x[2])
        else:
            A(x[1])
    for g in range(PRE):
        for x in dma(g) + hload(g):
            emit(x)
    S4 = ACC[4]
    A(f"""
    v_and_b32 v7, 31, v2
    v_lshrrev_b32 v8, 5, v2
    v_lshlrev_b32 v9, 7, v7
    v_lshl_add_u32 v9, v8, 6, v9
    s_lshl_b32 s39, s28, 12
    s_add_u32 s39, s39, {ST}
    s_mul_i32 s40, s27, 7168
    s_add_u32 s40, s40, {CSF}
    s_mul_i32 s41, s28, {112*1024}
    s_mul_i32 s42, s27, 7168
    s_add_u32 s41, s41, s42
    s_add_u32 s41, s41, {GF}
    s_mov_b32 s43, {PERMHI}
    v_add_u32 v10, 4096, v3
    """)
    for i in range(4):
        vm.issue(f"buffer_load_dwordx4 v[{S4+4*i}:{S4+4*i+3}], v9, s[20:23], s39 offen offset:{16*i}", 'st')
    def csload(t):
        r = CSR[t & 3]
        return ("v", f"buffer_load_dwordx4 v[{r}:{r+3}], v{3 if t < 4 else 10}, s[20:23], s40 offen offset:{(t&3)*1024}", ('cs', t))
    st = []
    st += [f"v_add_f32 v{S4+2*i}, v{S4+2*i}, v{S4+2*i+8}" for i in range(4)]
    st += [f"v_add_f32 v{S4+2*i+1}, v{S4+2*i+1}, v{S4+2*i+9}" for i in range(4)]
    st += [f"v_add_f32 v{S4}, v{S4}, v{S4+4}", f"v_add_f32 v{S4+1}, v{S4+1}, v{S4+5}",
           f"v_add_f32 v{S4+2}, v{S4+2}, v{S4+6}", f"v_add_f32 v{S4+3}, v{S4+3}, v{S4+7}",
           f"v_add_f32 v{S4}, v{S4}, v{S4+2}", f"v_add_f32 v{S4+1}, v{S4+1}, v{S4+3}",
           f"v_mov_b32 v{S4+2}, v{S4}", f"v_mov_b32 v{S4+3}, v{S4+1}",
           f"v_cmp_eq_u32 vcc, 0, v8", "s_nop 0",
           f"v_permlane32_swap_b32 v{S4+2}, v{S4}", f"v_permlane32_swap_b32 v{S4+3}, v{S4+1}",
           f"v_add_f32 v{S4}, v{S4}, v{S4+2}", f"v_add_f32 v{S4+1}, v{S4+1}, v{S4+3}",
           f"v_mul_f32 v{S4}, {1.0/512}, v{S4}", f"v_mul_f32 v{S4+1}, {1.0/512}, v{S4+1}",
           f"v_fma_f32 v{S4+1}, -v{S4}, v{S4}, v{S4+1}", f"v_max_f32 v{S4+1}, 0, v{S4+1}",
           f"v_add_f32 v{vRB}, 0x3727c5ac, v{S4+1}", f"v_rsq_f32 v{vRA}, v{vRB}",
           f"v_cndmask_b32 v{S4}, 0, v{S4}, vcc", f"v_sub_f32 v{S4}, 0, v{S4}",
           f"v_mul_f32 v{vRA}, {-1.4426950408889634}, v{vRA}",
           f"v_and_b32 v{S4+4}, 0xffff0000, v{S4}", f"v_sub_f32 v{S4+6}, v{S4}, v{S4+4}",
           f"v_and_b32 v{S4+5}, 0xffff0000, v{S4+6}", f"v_sub_f32 v{S4+6}, v{S4+6}, v{S4+5}",
           f"v_perm_b32 v{MU}, v{S4+5}, v{S4+4}, s43", f"v_perm_b32 v{MU+1}, v{S4+6}, v{S4+4}, s43",
           f"v_perm_b32 v{MU+2}, v{S4+4}, v{S4+5}, s43", f"v_mov_b32 v{MU+3}, 0"]
    def epi(t, a):
        L = []
        for j in range(0, 8, 2):
            t0, t1 = TMP[0], TMP[1]
            L += [f"v_mul_f32 v{t0}, v{vRA}, v{a+j}", f"v_mul_f32 v{t1}, v{vRA}, v{a+j+1}",
                  f"v_exp_f32 v{t0}, v{t0}", f"v_mul_f32 v{a+j}, v{a+j}, v{a+8+j}",
                  f"v_exp_f32 v{t1}, v{t1}", f"v_mul_f32 v{a+j+1}, v{a+j+1}, v{a+8+j+1}",
                  f"v_fma_f32 v{t0}, v{t0}, v{vRB}, v{vRB}", f"v_fma_f32 v{t1}, v{t1}, v{vRB}, v{vRB}",
                  f"v_rcp_f32 v{t0}, v{t0}", f"v_rcp_f32 v{t1}, v{t1}",
                  f"v_mul_f32 v{a+j}, v{a+j}, v{t0}", f"v_mul_f32 v{a+j+1}, v{a+j+1}, v{t1}",
                  f"v_cvt_pk_bf16_f32 v{a+8+j//2}, v{a+j}, v{a+j+1}"]
        L.append(("v", f"buffer_store_dwordx4 v[{a+8}:{a+11}], v{3 if t < 4 else 10}, s[20:23], s41 offen offset:{(t&3)*1024}", ('gst', t)))
        return L
    slot = {0: 0, 1: 1, 2: 2, 3: 3, 4: 4, 5: 0, 6: 1}
    seq = []
    for f, (t, ks) in enumerate(order):
        seq.append(('w', f, t, ks))
        if ks == 31:
            seq.append(('mu', None, t, None))
    fill = []
    def rd(f):
        return f"ds_read_b128 v[{WB[f%3]}:{WB[f%3]+3}], v3 offset:{(f % (RG*16))*1024}" if (f % (RG*16)) < 64 else \
               f"ds_read_b128 v[{WB[f%3]}:{WB[f%3]+3}], v11 offset:{((f % (RG*16))-64)*1024}"
    A("v_add_u32 v11, 65536, v3")
    prof_mark(A, 0)
    vm.wait(('g', 0))
    A("s_barrier")
    prof_mark(A, 1)
    A(rd(0)); A(rd(1))
    nread = 2
    NF = len(order)
    next_g = PRE
    next_h = PRE
    for idx, (kind, f, t, ks) in enumerate(seq):
        a = ACC[slot[t]]
        if kind == 'w':
            fr = f + 2
            pre = []
            if fr < NF and fr % 16 == 0:
                g = fr // 16
                vm.wait(('g', g))
                A("s_barrier")
                lim = min(NG - 1, g - 2 + RG, g + PRE)
                while next_g <= lim:
                    fill += dma(next_g); next_g += 1
                    if next_h < 8:
                        fill += hload(next_h); next_h += 1
            if f < 128 and t == 0:
                vm.wait(('h', ks))
            A(f"s_waitcnt lgkmcnt({1 if nread > f + 1 else 0})")
            C = "0" if ks == 0 else f"v[{a}:{a+15}]"
            w = WB[f % 3]
            A(f"v_mfma_f32_32x32x16_bf16 v[{a}:{a+15}], v[{w}:{w+3}], v[{H+4*ks}:{H+4*ks+3}], {C}")
            if fr < NF:
                A(rd(fr)); nread += 1
            if f == 40:
                fill.append(("w", 'st'))
                fill += st
            if f == 100:
                fill += [csload(0), csload(1), csload(2), csload(3)]
        else:
            vm.wait(('cs', t))
            r = CSR[t & 3]
            A(f"v_mfma_f32_32x32x16_bf16 v[{a}:{a+15}], v[{r}:{r+3}], v[{MU}:{MU+3}], v[{a}:{a+15}]")
            if t + 4 < 7:
                fill.insert(0, csload(t + 4))
            fill.append(("delay", idx + 2))
            fill += epi(t, a)
        budget = 20
        while fill and budget > 0:
            x = fill[0]
            if isinstance(x, tuple) and x[0] == "delay":
                if idx < x[1]:
                    break
                fill.pop(0); continue
            if isinstance(x, tuple) and x[0] == "w":
                vm.wait(x[1]); fill.pop(0); continue
            cost = 4
            if isinstance(x, str) and (x.startswith("v_exp") or x.startswith("v_rcp") or x.startswith("v_rsq") or x.startswith("v_perml")):
                cost = 8
            if isinstance(x, tuple) and x[0] == "v":
                cost = 8
            if isinstance(x, tuple) and x[0] == "s":
                cost = 2
            if cost > budget and budget < 20:
                break
            budget -= cost
            fill.pop(0)
            if isinstance(x, str):
                A(x)
            else:
                emit(x)
        if kind == 'w' and f in (63, 127, 159, 191):
            prof_mark(A, {63: 2, 127: 3, 159: 4, 191: 5}[f])
        if idx + 1 < len(seq) and seq[idx + 1][0] == 'w' and seq[idx + 1][3] == 0 and seq[idx + 1][2] >= 5:
            tprev = seq[idx + 1][2] - 5
            assert not any(isinstance(x, tuple) and x[0] == 'v' and x[2] == ('gst', tprev) for x in fill), "acc slot not free"
    prof_mark(A, 6)
    for x in fill:
        if isinstance(x, str):
            A(x)
        elif x[0] in ("v", "s"):
            emit(x)
    prof_end(A, 4, 4)
    A.label("K4_end")
    A("s_endpgm")
    return ("k4_kernel", A.finish("k4"), 256, 0, 256, RG * 16384)
```

```python
QF   = 0x000000
KV   = 0x200000
OF   = 0x600000
HF   = 0x800000
GF   = 0xA00000
WOF  = 0x1100000
W13F = 0x1200000
CSF  = 0x1580000
W2F  = 0x1600000
ST   = 0x1800000
FL   = 0x1880000
F1, F2, F3, F4, F0 = FL, FL + 0x1000, FL + 0x2000, FL + 0x3000, FL + 0x4000
WS_BYTES = 0x2000000
```

```python
import sys, os
from asm import *
from layout import *
from gen import split3, pack_c, pack_m, halfsum, ONES, PERMHI, build
from kern3 import VM

ENV = lambda k, d: int(os.environ.get(k, str(d)))
TS = 2080
LOG2E = 1.4426950408889634

WS, XS, OS, SA, SP1, DS, SP2 = 4, 8, 12, 16, 20, 24, 64
sONES, sPERM, sTO = 28, 29, 30
sXCD, sIDX = 52, 53
def S4(b): return f"s[{b}:{b+3}]"
def Vr(b, n=4): return f"v[{b}:{b+n-1}]"
def Ar(b, n=4): return f"a[{b}:{b+n-1}]"
MF = "v_mfma_f32_32x32x16_bf16"

def srd(A, s, lo, size):
    A(f"s_mov_b32 s{s}, s{lo}")
    A(f"s_mov_b32 s{s+1}, s{lo+1}")
    A(f"s_mov_b32 s{s+2}, {size}")
    A(f"s_mov_b32 s{s+3}, 0x20000")

def poll(A, name, vaddr, vtmp, soff, srdb=WS):
    A(f"""
    {name}:
    buffer_load_dword v{vtmp}, v{vaddr}, {S4(srdb)}, {soff} offen sc1
    s_waitcnt vmcnt(0)
    v_cmp_eq_u32 vcc, 1, v{vtmp}
    s_cmp_eq_u64 vcc, -1
    s_cbranch_scc1 {name}_ok
    s_cmp_eq_u32 s{sTO}, 0
    s_cbranch_scc1 {name}_ok
    s_sub_u32 s{sTO}, s{sTO}, 1
    s_sleep 1
    s_branch {name}
    {name}_ok:
    """)

def setflag(A, name, soff, v0, v1, wave=0, srdb=WS):
    A(f"""
    s_cmp_lg_u32 s3, {wave}
    s_cbranch_scc1 {name}
    v_mov_b32 v{v0}, 0
    v_mov_b32 v{v1}, 1
    s_mov_b64 exec, 1
    buffer_store_dword v{v1}, v{v0}, {S4(srdb)}, {soff} offen sc1
    s_mov_b64 exec, -1
    {name}:
    """)

def fused():
    A = Asm()
    vm = VM(A)
    L16, LN = 1, 2
    NS = 5
    WREG = 4 * NS * 4096
    CSX = WREG + NS * 12288
    PCS = CSX + 1536
    accQ, accK, accV = 32, 48, 64
    XB = [80, 84]; WB = [88, 100]
    vSum, vSq, vC = 112, 113, [114, 115, 116]
    vXa, vWa = [8, 9, 10, 11], [12, 13, 14, 15]
    vOX, vOW = [16, 17, 18, 19], [20, 21, 22]
    vPO, vDBG = 24, 25
    sTB, sHP, sBLK = 54, 55, 56
    sX, sWq, sMX, sMW = 57, 58, 59, 60
    sPO, sPS, sPD = 61, 62, 63
    prof_start(A)
    A(f"""
    s_load_dwordx16 s[32:47], s[0:1], 0
    s_load_dwordx4 s[48:51], s[0:1], 64
    s_cmp_ge_u32 s2, 256
    s_cbranch_scc1 F_exit
    v_lshrrev_b32 v3, 6, v0
    v_and_b32 v{LN}, 63, v0
    v_readfirstlane_b32 s3, v3
    v_lshlrev_b32 v{L16}, 4, v{LN}
    s_and_b32 s{sXCD}, s2, 7
    s_lshr_b32 s{sIDX}, s2, 3
    s_lshr_b32 s{sTB}, s{sXCD}, 1
    s_lshl_b32 s{sTB}, s{sTB}, 2
    s_lshr_b32 s31, s{sIDX}, 3
    s_add_u32 s{sTB}, s{sTB}, s31
    s_and_b32 s{sHP}, s{sXCD}, 1
    s_lshl_b32 s{sHP}, s{sHP}, 3
    s_and_b32 s31, s{sIDX}, 7
    s_add_u32 s{sHP}, s{sHP}, s31
    s_lshl_b32 s{sBLK}, s{sTB}, 2
    s_add_u32 s{sBLK}, s{sBLK}, s3
    v_lshrrev_b32 v3, 3, v{LN}
    v_lshrrev_b32 v4, 4, v{LN}
    v_and_b32 v5, 7, v{LN}
    """)
    for i in range(4):
        A(f"v_add_u32 v6, {4*i}, v4")
        A(f"v_and_b32 v6, 7, v6")
        A(f"v_xor_b32 v6, v6, v5")
        A(f"v_lshlrev_b32 v6, 4, v6")
        A(f"v_lshl_add_u32 v6, v3, 10, v6")
        A(f"v_add_u32 v{vOX[i]}, {7*1024*i}, v6")
    for i in range(3):
        A(f"v_add_u32 v6, {64*i}, v{LN}")
        A(f"v_mul_u32_u24 v7, 171, v6")
        A(f"v_lshrrev_b32 v7, 11, v7")
        A(f"v_mul_u32_u24 v23, 12, v7")
        A(f"v_sub_u32 v6, v6, v23")
        A(f"v_mul_u32_u24 v7, 3072, v7")
        A(f"v_lshrrev_b32 v23, 2, v6")
        A(f"v_lshl_add_u32 v7, v23, 10, v7")
        A(f"v_and_b32 v6, 3, v6")
        A(f"v_lshl_add_u32 v7, v6, 4, v7")
        A(f"v_subrev_u32 v{vOW[i]}, {1024*i}, v7")
    A(f"""
    s_lshl_b32 s{sX}, s{sBLK}, 15
    s_mul_i32 s{sWq}, s3, {16*3072}
    s_lshl_b32 s31, s{sHP}, 6
    s_add_u32 s{sWq}, s{sWq}, s31
    s_mul_i32 s{sMX}, s3, {NS*4096}
    s_mul_i32 s{sMW}, s3, 3072
    s_add_u32 s{sMW}, s{sMW}, {WREG}
    s_mov_b32 s{sONES}, {ONES}
    s_mov_b32 s{sPERM}, {PERMHI}
    s_mov_b32 s{sTO}, 60000
    s_waitcnt lgkmcnt(0)
    """)
    srd(A, XS, 32, 2048 * 1024)
    srd(A, SA, 34, 512 * 3072)
    srd(A, WS, 50, WS_BYTES)
    def dma1(c):
        L = []
        sl = c % NS
        L.append(("s", f"s_add_u32 m0, s{sMX}, {sl*4096}"))
        for i in range(4):
            L.append(("v", f"buffer_load_dwordx4 v{vOX[i]}, {S4(XS)}, s{sX} offen offset:{i*1024} lds", ('c', c)))
        L.append(("s", f"s_add_u32 m0, s{sMW}, {sl*12288}"))
        L.append(("s", f"s_add_u32 s{sX}, s{sX}, 128"))
        for i in range(3):
            L.append(("v", f"buffer_load_dwordx4 v{vOW[i]}, {S4(SA)}, s{sWq} offen offset:{i*1024} lds", ('c', c)))
        L.append(("s", f"s_add_u32 s{sWq}, s{sWq}, {64*3072}"))
        return L
    def emit(x):
        if isinstance(x, str):
            A(x)
        elif x[0] == "v":
            vm.issue(x[1], x[2])
        else:
            A(x[1])
    PRO = ENV("P1PRO", 3)
    for x in dma1(0) + dma1(1):
        emit(x)
    A(f"""
    s_cmp_lg_u32 s2, 0
    s_cbranch_scc1 F_noz
    v_mov_b32 v4, 0
    v_mov_b32 v5, 0
    v_mov_b32 v6, 0
    v_mov_b32 v7, 0
    s_mul_i32 s31, s3, 5120
    s_add_u32 s31, s31, {FL}
    """)
    for i in range(4):
        A(f"buffer_store_dwordx4 v[4:7], v{L16}, {S4(WS)}, s31 offen offset:{1024*i} sc1")
    A(f"s_add_u32 s31, s31, 1024")
    A(f"buffer_store_dwordx4 v[4:7], v{L16}, {S4(WS)}, s31 offen offset:3072 sc1")
    A("s_nop 1")
    A.label("F_noz")
    srd(A, OS, 46, 2048 * 1024)
    srd(A, DS, 48, 256)
    A(f"""
    s_cmp_ge_u32 s2, 112
    s_cbranch_scc1 F_prB
    """)
    srd(A, SP1, 40, 512 * 3584)
    srd(A, SP2, 42, 512 * 3584)
    A(f"""
    v_lshrrev_b32 v{vPO}, 1, v{LN}
    v_mul_u32_u24 v{vPO}, 3584, v{vPO}
    v_and_b32 v3, 1, v{LN}
    v_lshl_add_u32 v{vPO}, v3, 4, v{vPO}
    s_mul_i32 s{sPO}, s3, {128*3584}
    s_lshl_b32 s31, s2, 5
    s_add_u32 s{sPO}, s{sPO}, s31
    s_mov_b32 s{sPS}, {32*3584-1024}
    s_lshl_b32 s{sPD}, s2, 15
    s_lshl_b32 s31, s3, 13
    s_add_u32 s{sPD}, s{sPD}, s31
    s_add_u32 s{sPD}, s{sPD}, {W13F}
    s_branch F_prE
    F_prB:
    s_cmp_ge_u32 s2, 224
    s_cselect_b32 s{SP1}, s36, s44
    s_cselect_b32 s{SP1+1}, s37, s45
    s_mov_b32 s{SP1+2}, {1792*1024}
    s_mov_b32 s32, 112
    s_mov_b32 s33, 112
    s_mov_b32 s34, {W2F}
    s_cmov_b32 s{SP1+2}, {512*1024}
    s_cmov_b32 s32, 224
    s_cmov_b32 s33, 32
    s_cmov_b32 s34, {WOF}
    s_mov_b32 s{SP1+3}, 0x20000
    """)
    srd(A, SP2, 44, 0)
    A(f"""
    s_sub_u32 s32, s2, s32
    s_and_b32 s35, s32, 15
    s_lshr_b32 s32, s32, 4
    s_lshl_b32 s32, s32, 2
    s_add_u32 s32, s32, s3
    s_lshl_b32 s{sPO}, s32, 16
    s_lshl_b32 s31, s35, 6
    s_add_u32 s{sPO}, s{sPO}, s31
    s_mov_b32 s{sPS}, {15*1024}
    s_mul_i32 s{sPD}, s35, s33
    s_lshl_b32 s31, s32, 2
    s_add_u32 s{sPD}, s{sPD}, s31
    s_lshl_b32 s{sPD}, s{sPD}, 10
    s_add_u32 s{sPD}, s{sPD}, s34
    v_lshrrev_b32 v{vPO}, 2, v{LN}
    v_lshlrev_b32 v{vPO}, 10, v{vPO}
    v_and_b32 v3, 3, v{LN}
    v_lshl_add_u32 v{vPO}, v3, 4, v{vPO}
    F_prE:
    """)
    def dmap():
        L = []
        for i in range(4):
            L.append(("s", f"s_add_u32 m0, s{sMX}, {3*4096}"))
            L.append(("v", f"buffer_load_dwordx4 v{vPO}, {S4(SP1)}, s{sPO} offen offset:{i*1024} lds", 'prep'))
            L.append(("s", f"s_add_u32 m0, s{sMX}, {4*4096}"))
            L.append(("v", f"buffer_load_dwordx4 v{vPO}, {S4(SP2)}, s{sPO} offen offset:{i*1024} lds", 'prep'))
            if i < 3:
                L.append(("s", f"s_add_u32 s{sPO}, s{sPO}, s{sPS}"))
        return L
    A(f"""
    v_and_b32 v3, 31, v{LN}
    v_lshrrev_b32 v4, 5, v{LN}
    v_bfe_u32 v5, v3, 1, 3
    v_lshlrev_b32 v6, 7, v3
    v_add_u32 v6, s{sMX}, v6
    v_bfe_u32 v7, v{LN}, 2, 2
    v_lshl_add_u32 v7, v4, 3, v7
    v_mul_u32_u24 v7, 192, v7
    v_bfe_u32 v23, v{LN}, 4, 1
    v_lshl_add_u32 v7, v23, 5, v7
    v_and_b32 v23, 3, v{LN}
    v_lshl_add_u32 v7, v23, 3, v7
    v_add_u32 v7, {WREG}, v7
    """)
    for i in range(4):
        A(f"s_add_u32 s35, s3, {i}")
        A(f"s_and_b32 s35, s35, 3")
        A(f"s_lshl_b32 s36, s35, 1")
        A(f"v_add_u32 v23, s36, v4")
        A(f"v_xor_b32 v23, v23, v5")
        A(f"v_lshl_add_u32 v{vXa[i]}, v23, 4, v6")
        A(f"s_mul_i32 s36, s35, 3072")
        A(f"v_add_u32 v{vWa[i]}, s36, v7")
    for r in list(range(accQ, accQ + 48)) + [vSum, vSq] + vC:
        A(f"v_mov_b32 v{r}, 0")
    for c in range(2, PRO):
        for x in dma1(c):
            emit(x)
    def reads1(c, i, b):
        sl = c % NS
        L = [f"ds_read_b128 {Vr(XB[b])}, v{vXa[i]} offset:{sl*4096}"]
        for seg in range(3):
            for jj in range(2):
                r = WB[b] + 4 * seg + 2 * jj
                L.append(f"ds_read_b64_tr_b16 v[{r}:{r+1}], v{vWa[i]} offset:{sl*12288+jj*768+seg*64}")
        return L
    def compute1(i, b, extra):
        X = Vr(XB[b])
        W = [Vr(WB[b] + 4 * s) for s in range(3)]
        M = [f"{MF} {Vr(accQ,16)}, {W[0]}, {X}, {Vr(accQ,16)}",
             f"{MF} {Vr(accK,16)}, {W[1]}, {X}, {Vr(accK,16)}",
             f"{MF} {Vr(accV,16)}, {X}, {W[2]}, {Vr(accV,16)}"]
        n = len(extra)
        per = [(n + 2) // 3, (n + 1) // 3, n // 3]
        p = 0
        for m in range(3):
            A(M[m])
            for l in extra[p:p + per[m]]:
                emit(l)
            p += per[m]
        for d in range(4):
            A(f"v_dot2c_f32_bf16 v{vSum}, s{sONES}, v{XB[b]+d}")
            A(f"v_dot2c_f32_bf16 v{vSq}, v{XB[b]+d}, v{XB[b]+d}")
        if i == 0:
            for d in range(4):
                for s in range(3):
                    A(f"v_dot2c_f32_bf16 v{vC[s]}, s{sONES}, v{WB[b]+4*s+d}")
    prof_mark(A, name='pro')
    vm.wait(('c', 0))
    A("s_barrier")
    for l in reads1(0, 0, 0):
        A(l)
    pend = {c: [] for c in range(8)}
    for c in range(PRO, 8):
        pend[max(c - PRO, c - NS + 1)] += dma1(c)
    pend[5] += dmap()
    pend[6] += [f"v_mov_b32 v{vDBG}, 0", ("v", f"buffer_load_dword v{vDBG}, v{vDBG}, {S4(DS)}, 0 offen sc1", 'dbg')]
    step = 0
    for c in range(8):
        q = pend[c]
        for i in range(4):
            b = step & 1
            A("s_waitcnt lgkmcnt(0)")
            extra = []
            if i < 3:
                extra += reads1(c, i + 1, b ^ 1)
            elif c < 7:
                vm.wait(('c', c + 1))
                A("s_barrier")
                if c + 1 in (1, 3, 5, 7):
                    prof_mark(A, name=f"c{c+1}")
                if c + 1 == 2:
                    A("s_cmp_lg_u32 s2, 0")
                    A("s_cbranch_scc1 F_nopub")
                    setflag(A, "F_nopub2", "0", 26, 27, srdb=DS)
                    A.label("F_nopub")
                extra += reads1(c + 1, 0, b ^ 1)
            k = (len(q) + (3 - i)) // (4 - i)
            extra += q[:k]; q = q[k:]
            compute1(i, b, extra)
            step += 1
    prof_mark(A, name='p1loop')
    halfsum(A, [vSum, vSq] + vC, 80)
    A(f"""
    v_lshlrev_b32 v88, 4, v3
    v_add_u32 v88, {CSX}, v88
    s_lshl_b32 s35, s3, 2
    v_add_u32 v89, s35, v88
    """)
    for s in range(3):
        A(f"ds_write_b32 v89, v{vC[s]} offset:{512*s}")
    A(f"""
    v_mul_f32 v{vSum}, {1.0/512}, v{vSum}
    v_mul_f32 v{vSq}, {1.0/512}, v{vSq}
    v_fma_f32 v{vSq}, -v{vSum}, v{vSum}, v{vSq}
    v_max_f32 v{vSq}, 0, v{vSq}
    v_add_f32 v{vSq}, 0x3727c5ac, v{vSq}
    v_rsq_f32 v{vSq}, v{vSq}
    v_lshlrev_b32 v90, 2, v3
    v_add_u32 v90, s{sMX}, v90
    v_lshlrev_b32 v91, 4, v4
    v_add_u32 v91, s{sMX}, v91
    v_cmp_eq_u32 vcc, 0, v4
    ds_write_b32 v90, v{vSq}
    v_cndmask_b32 v{vSum}, 0, v{vSum}, vcc
    v_sub_f32 v{vSum}, 0, v{vSum}
    s_waitcnt lgkmcnt(0)
    s_barrier
    """)
    for s in range(3):
        A(f"ds_read_b128 {Vr(96+4*s)}, v88 offset:{512*s}")
    for g in range(4):
        A(f"ds_read_b128 {Vr(120+4*g)}, v91 offset:{32*g}")
    split3(A, vSum, 80, 81, 82)
    pack_m(A, 84, 80, 81, 82, sPERM)
    for s in range(3):
        A(f"s_waitcnt lgkmcnt({6-s})")
        r = 96 + 4 * s
        A(f"v_add_f32 v{r}, v{r}, v{r+1}")
        A(f"v_add_f32 v{r+2}, v{r+2}, v{r+3}")
        A(f"v_add_f32 v{r}, v{r}, v{r+2}")
        split3(A, r, 80, 81, 82)
        pack_c(A, r, 80, 81, 82, sPERM)
    A(f"{MF} {Vr(accQ,16)}, v[96:99], v[84:87], {Vr(accQ,16)}")
    A(f"{MF} {Vr(accK,16)}, v[100:103], v[84:87], {Vr(accK,16)}")
    A(f"{MF} {Vr(accV,16)}, v[84:87], v[104:107], {Vr(accV,16)}")
    A(f"""
    v_mul_f32 v{vSum}, {0.25*LOG2E}, v{vSq}
    v_and_b32 v89, 15, v{LN}
    v_lshl_add_u32 v89, v4, 4, v89
    v_lshlrev_b32 v89, 5, v89
    v_bfe_u32 v90, v{LN}, 4, 1
    v_lshl_add_u32 v89, v90, 17, v89
    s_lshl_b32 s38, s{sHP}, 7
    s_add_u32 s38, s38, s{sBLK}
    s_lshl_b32 s39, s38, 10
    s_add_u32 s40, s39, 65536
    s_lshl_b32 s41, s38, 11
    s_add_u32 s41, s41, {KV}
    s_add_u32 s42, s41, 131072
    s_waitcnt lgkmcnt(0)
    """)
    def scale_store(acc, mulf, stores):
        for r in range(16):
            A(f"v_mul_f32 v{acc+r}, v{mulf(r)}, v{acc+r}")
        for r in range(8):
            A(f"v_cvt_pk_bf16_f32 v{acc+r}, v{acc+2*r}, v{acc+2*r+1}")
        for e in range(2):
            vm.issue(stores[e].format(d=Vr(acc + 4 * e), s=S4(WS)), 'qkv')
    scale_store(accK, lambda r: vSq, ["buffer_store_dwordx4 {d}, v1, {s}, s41 offen sc1", "buffer_store_dwordx4 {d}, v1, {s}, s42 offen sc1"])
    scale_store(accV, lambda r: 120 + r, ["buffer_store_dwordx4 {d}, v89, {s}, s41 offen offset:1024 sc1", "buffer_store_dwordx4 {d}, v89, {s}, s41 offen offset:1040 sc1"])
    scale_store(accQ, lambda r: vSum, ["buffer_store_dwordx4 {d}, v1, {s}, s39 offen sc1", "buffer_store_dwordx4 {d}, v1, {s}, s40 offen sc1"])
    prof_mark(A, name='p1epi')
    PR = 140
    A(f"""
    v_bfe_u32 v5, v{LN}, 4, 1
    v_bfe_u32 v6, v{LN}, 2, 2
    v_and_b32 v7, 3, v{LN}
    v_lshl_add_u32 v8, v4, 2, v6
    s_add_u32 s35, s{sMX}, {3*4096}
    """)
    vm.wait('prep')
    A(f"""
    s_cmp_ge_u32 s2, 112
    s_cbranch_scc1 F_ppB
    v_lshlrev_b32 v10, 12, v5
    v_lshl_add_u32 v10, v8, 5, v10
    v_lshl_add_u32 v10, v7, 3, v10
    v_add_u32 v10, s35, v10
    v_mov_b32 v11, 0
    v_mov_b32 v12, 0
    """)
    for ks in range(8):
        for jj in range(2):
            A(f"ds_read_b64_tr_b16 v[{PR+4*ks+2*jj}:{PR+1+4*ks+2*jj}], v10 offset:{512*ks+256*jj}")
    for ks in range(8):
        A(f"s_waitcnt lgkmcnt({14-2*ks})")
        if ks == 4:
            A(f"s_add_u32 s{sPD}, s{sPD}, 4096")
        A(f"buffer_store_dwordx4 {Vr(PR+4*ks)}, v{L16}, {S4(WS)}, s{sPD} offen offset:{(ks&3)*1024} sc1")
        for d in range(4):
            A(f"v_dot2c_f32_bf16 v{11+(d&1)}, s{sONES}, v{PR+4*ks+d}")
    A("v_add_f32 v11, v11, v12")
    halfsum(A, [11], 12)
    A(f"""
    v_lshlrev_b32 v13, 4, v3
    v_add_u32 v13, {PCS}, v13
    s_lshl_b32 s35, s3, 2
    v_add_u32 v14, s35, v13
    ds_write_b32 v14, v11
    s_waitcnt vmcnt(8)
    s_branch F_ppE
    F_ppB:
    v_lshlrev_b32 v10, 5, v5
    v_lshl_add_u32 v10, v8, 6, v10
    v_lshl_add_u32 v10, v7, 3, v10
    v_add_u32 v10, s35, v10
    """)
    for ks in range(4):
        for jj in range(2):
            A(f"ds_read_b64_tr_b16 v[{PR+4*ks+2*jj}:{PR+1+4*ks+2*jj}], v10 offset:{1024*ks+512*jj}")
    for ks in range(4):
        A(f"s_waitcnt lgkmcnt({6-2*ks})")
        A(f"buffer_store_dwordx4 {Vr(PR+4*ks)}, v{L16}, {S4(WS)}, s{sPD} offen offset:{ks*1024} sc1")
    A("s_waitcnt vmcnt(4)")
    A.label("F_ppE")
    A(f"""
    v_cmp_eq_u32 vcc, 1, v{vDBG}
    s_cmp_eq_u64 vcc, -1
    s_cbranch_scc1 F_dbg_ok
    v_mov_b32 v26, 0
    """)
    poll(A, "F_dbg", 26, vDBG, "0", srdb=DS)
    sHEAD, sQB, sQBLK = 54, 55, 56
    A(f"""
    s_lshl_b32 s32, s{sHP}, 4
    s_add_u32 s32, s32, s{sTB}
    s_lshl_b32 s32, s32, 4
    s_add_u32 s32, s32, {F1}
    s_lshl_b32 s{sHEAD}, s{sXCD}, 2
    s_lshr_b32 s31, s{sIDX}, 3
    s_add_u32 s{sHEAD}, s{sHEAD}, s31
    s_and_b32 s{sQB}, s{sIDX}, 7
    s_lshl_b32 s{sQBLK}, s{sQB}, 3
    s_lshl_b32 s31, s3, 1
    s_add_u32 s{sQBLK}, s{sQBLK}, s31
    s_waitcnt lgkmcnt(0)
    s_barrier
    """)
    setflag(A, "F_f1", "s32", 26, 27)
    prof_mark(A, name='f1set')
    A(f"""
    s_cmp_ge_u32 s2, 112
    s_cbranch_scc1 F_ncs
    s_cmp_lg_u32 s3, 1
    s_cbranch_scc1 F_ncs
    ds_read_b128 v[48:51], v13
    s_lshl_b32 s34, s2, 10
    s_add_u32 s34, s34, {CSF}
    s_waitcnt lgkmcnt(0)
    v_add_f32 v48, v48, v49
    v_add_f32 v50, v50, v51
    v_add_f32 v48, v48, v50
    """)
    split3(A, 48, 49, 50, 51)
    pack_c(A, 52, 49, 50, 51, sPERM)
    A(f"buffer_store_dwordx4 v[52:55], v{L16}, {S4(WS)}, s34 offen sc1")
    A("s_nop 1")
    A.label("F_ncs")

    Q = [8, 12]; KB = [16, 20]; VB = [24, 32]; N = [40, 56]; S = [72, 88]; P = [104, 112]; O = [120, 136]
    vKa, vVa = 4, 5
    WO = 152; RX = 216
    vOF = [L16] + list(range(224, 231))
    vL32, vF0, vRX = 231, 232, 236
    sKV, sMK, sQ = 57, 58, 59
    sTT, sCT = 60, 61
    sWo0, sWo1, sW20, sW21, sCS, sRX = 32, 33, 34, 35, 36, 37
    sTB4, sCG = 62, 63
    A(f"""
    v_mov_b32 v6, {ONES}
    v_mov_b32 v7, {ONES}
    v_mul_u32_u24 v16, {TS}, v{LN}
    v_and_b32 v3, 15, v{LN}
    v_lshlrev_b32 v3, 4, v3
    s_lshr_b32 s31, s{sHEAD}, 1
    s_lshl_b32 s31, s31, 8
    s_add_u32 s31, s31, {F1}
    s_lshl_b32 s{sKV}, s{sHEAD}, 17
    s_lshl_b32 s{sMK}, s3, 12
    s_add_u32 s{sKV}, s{sKV}, s{sMK}
    s_add_u32 s{sKV}, s{sKV}, {KV-32}
    s_mul_i32 s{sMK}, s3, {2*TS}
    s_lshl_b32 s{sQ}, s{sHEAD}, 6
    s_add_u32 s{sQ}, s{sQ}, s{sQBLK}
    s_lshl_b32 s{sQ}, s{sQ}, 10
    v_add_u32 v{vL32}, 32, v{L16}
    """)
    for i in range(4):
        A(f"ds_write_b64 v16, v[6:7] offset:{2048+8*i}")
    A(f"""
    v_mov_b32 v{vKa}, v{L16}
    v_and_b32 v17, 15, v{LN}
    v_lshrrev_b32 v18, 5, v{LN}
    v_lshl_add_u32 v17, v18, 4, v17
    v_lshlrev_b32 v17, 5, v17
    v_and_b32 v18, 16, v{LN}
    v_cmp_eq_u32 vcc, 0, v18
    v_mov_b32 v19, 1024
    v_cndmask_b32 v{vVa}, v19, v17, vcc
    v_add_u32 v{vVa}, 1024, v{vVa}
    v_add_u32 v{vKa+2}, {32*TS}, v{vKa}
    v_add_u32 v{vVa+2}, {32*TS}, v{vVa}
    """)
    A.lines = A.lines[:-2]
    for k in range(1, 8):
        A(f"v_add_u32 v{vOF[k]}, {4096*k}, v{L16}")
    poll(A, "F_p1", 3, 20, "s31")
    prof_mark(A, name='f1poll')
    def kvdma(g):
        L = [("s", f"s_add_u32 m0, s{sMK}, {8*g*TS}"),
             ("v", f"buffer_load_dwordx4 v{vL32}, {S4(WS)}, s{sKV} offen sc1 lds", ('kv', g)),
             ("v", f"buffer_load_dwordx4 v{vL32}, {S4(WS)}, s{sKV} offen offset:1024 sc1 lds", ('kv', g)),
             ("v", f"buffer_load_dwordx4 v{L16}, {S4(WS)}, s{sKV} offen offset:{TS} sc1 lds", ('kv', g)),
             ("v", f"buffer_load_dwordx4 v{L16}, {S4(WS)}, s{sKV} offen offset:{TS+1024} sc1 lds", ('kv', g)),
             ("s", f"s_add_u32 s{sKV}, s{sKV}, 16384")]
        return L
    for x in kvdma(0):
        emit(x)
    for q in range(2):
        vm.issue(f"buffer_load_dwordx4 {Vr(Q[q])}, v{L16}, {S4(WS)}, s{sQ} offen offset:{1024*q} sc1", 'q')
    for x in kvdma(1):
        emit(x)
    vKb, vVb = 233 + 4, 233 + 5
    A(f"""
    v_add_u32 v{vKb}, {32*TS}, v{vKa}
    v_add_u32 v{vVb}, {32*TS}, v{vVa}
    s_mov_b32 s{sTT}, s{sHEAD}
    s_mov_b32 s{sCT}, s{sQB}
    s_lshl_b32 s{sTB4}, s{sXCD}, 1
    s_lshr_b32 s31, s{sIDX}, 4
    s_add_u32 s{sTB4}, s{sTB4}, s31
    s_and_b32 s{sCG}, s{sIDX}, 15
    s_and_b32 s38, s3, 1
    s_lshl_b32 s39, s{sCT}, 1
    s_add_u32 s39, s39, s38
    s_xor_b32 s40, s39, 1
    s_lshl_b32 s41, s3, 13
    s_add_u32 s41, s41, {WOF}
    s_lshl_b32 s{sWo0}, s39, 15
    s_add_u32 s{sWo0}, s{sWo0}, s41
    s_lshl_b32 s{sWo1}, s40, 15
    s_add_u32 s{sWo1}, s{sWo1}, s41
    s_mul_i32 s41, s3, {28*1024}
    s_add_u32 s41, s41, {W2F}
    s_mul_i32 s{sW20}, s39, {112*1024}
    s_add_u32 s{sW20}, s{sW20}, s41
    s_mul_i32 s{sW21}, s40, {112*1024}
    s_add_u32 s{sW21}, s{sW21}, s41
    s_mul_i32 s{sCS}, s{sCG}, 7168
    s_add_u32 s{sCS}, s{sCS}, {CSF}
    s_lshr_b32 s38, s3, 1
    s_lshl_b32 s40, s{sTT}, 1
    s_add_u32 s40, s40, s38
    s_lshl_b32 s{sRX}, s40, 15
    s_lshl_b32 s41, s39, 6
    s_add_u32 s{sRX}, s{sRX}, s41
    v_and_b32 v16, 31, v{LN}
    v_lshrrev_b32 v17, 5, v{LN}
    v_lshlrev_b32 v{vRX}, 10, v16
    v_lshl_add_u32 v{vRX}, v17, 4, v{vRX}
    s_lshl_b32 s42, s2, 2
    s_add_u32 s42, s42, {F0}
    """)
    sNT, sBK = 39, 40
    for r in range(8):
        A(f"v_mov_b32 v{P[1]+r}, 0")
        A(f"v_mov_b32 v{VB[1]+r}, 0")
    for q in range(2):
        for r in range(16):
            A(f"v_mov_b32 v{O[q]+r}, 0")
    vm.wait('q', "lgkmcnt(0)")
    A("s_barrier")
    setflag(A, "F_f0", "s42", 6, 7)
    A(f"ds_read_b128 {Vr(KB[0])}, v{vKa}")
    A(f"ds_read_b128 {Vr(KB[1])}, v{vKa} offset:{TS}")
    A(f"ds_read_b128 {Vr(VB[0])}, v{vVa}")
    A(f"ds_read_b128 {Vr(VB[0]+4)}, v{vVa} offset:16")
    A("s_waitcnt lgkmcnt(3)")
    for q in range(2):
        A(f"{MF} {Vr(S[q],16)}, {Vr(KB[0])}, {Vr(Q[q])}, 0")
    for q in range(2):
        s = S[q]
        A(f"v_max3_f32 v{6+q}, v{s}, v{s+1}, v{s+2}")
        for r in range(3, 15, 2):
            A(f"v_max3_f32 v{6+q}, v{6+q}, v{s+r}, v{s+r+1}")
        A(f"v_max_f32 v{6+q}, v{6+q}, v{s+15}")
    halfsum(A, [6, 7], P[0], op="v_max_f32")
    for r in range(16):
        A(f"v_sub_f32 v{N[0]+r}, 0, v6")
    A(f"{MF} {Vr(S[0],16)}, {Vr(KB[0])}, {Vr(Q[0])}, {Vr(N[0],16)}")
    for r in range(16):
        A(f"v_sub_f32 v{N[1]+r}, 0, v7")
    for r in range(12, 16):
        A(f"v_mov_b32 v{S[1]+r}, 0")
    A("s_waitcnt lgkmcnt(0)")
    prof_mark(A, name='p2pro')
    def slots_of(seq):
        lead = []; out = []
        for x in seq:
            if x[0] == "v":
                out.append([x])
            elif out:
                out[-1].append(x)
            else:
                lead.append(x)
        return lead, out
    seq = []
    for g in range(2, 8):
        seq += kvdma(g)
    lead, sl_kv = slots_of(seq)
    for x in lead:
        emit(x)
    pre = []
    for s in range(8):
        for n in range(2):
            pre.append([("v", f"buffer_load_dwordx4 {Vr(WO+8*s+4*n)}, v{vOF[s>>2]}, {S4(WS)}, s{[sWo0,sWo1][n]} offen offset:{(s&3)*1024} sc1", 'wo')])
    for e in range(2):
        pre.append([("v", f"buffer_load_dwordx4 {Vr(RX+4*e)}, v{vRX}, {S4(XS)}, s{sRX} offen offset:{32*e}", 'rx')])
    for s in range(28):
        for n in range(2):
            pre.append([("v", f"buffer_load_dwordx4 {Ar(8*s+4*n)}, v{vOF[s>>2]}, {S4(WS)}, s{[sW20,sW21][n]} offen offset:{(s&3)*1024} sc1", 'w2')])
    for t in range(7):
        pre.append([("v", f"buffer_load_dwordx4 {Ar(224+4*t)}, v{vOF[t>>2]}, {S4(WS)}, s{sCS} offen offset:{(t&3)*1024} sc1", 'cs')])
    TF0 = 16
    sched = {}
    i = 0
    for kt in range(64):
        for sl in range(2):
            if i < len(sl_kv):
                sched[(kt, sl)] = sl_kv[i]; i += 1
            elif i == len(sl_kv):
                sched[(kt, sl)] = [("v", f"buffer_load_dwordx4 {Vr(vF0)}, v{L16}, {S4(WS)}, s43 offen sc1", 'f0')]; i += 1
            elif kt > TF0 and pre:
                sched[(kt, sl)] = pre.pop(0)
    assert not pre, len(pre)
    A(f"s_mov_b32 s43, {F0}")
    def kaddr(kt):
        return (vKa, kt * TS) if kt < 31 else (vKb, (kt - 32) * TS) if kt >= 32 else (vKa, kt * TS)
    def vaddr(kt):
        return (vVa, kt * TS) if kt < 31 else (vVb, (kt - 32) * TS) if kt >= 32 else (vVa, kt * TS)
    assert 31 * TS + 1024 + 16 < 65536
    A(".p2align 3")
    NU = 128
    for u in range(NU):
        kt, q = u >> 1, u & 1
        un = u + 1; ktn, qn = un >> 1, un & 1
        up = u - 1; ktp, qp = up >> 1, up & 1
        s = S[u & 1]; p = P[u & 1]; sn = S[un & 1]; pp = P[up & 1]
        M = [f"{MF} {Vr(sn,16)}, {Vr(KB[ktn&1])}, {Vr(Q[qn])}, {Vr(N[qn],16)}" if un < NU else None,
             f"{MF} {Vr(O[qp],16)}, {Vr(VB[ktp&1])}, {Vr(pp)}, {Vr(O[qp],16)}",
             f"{MF} {Vr(O[qp],16)}, {Vr(VB[ktp&1]+4)}, {Vr(pp+4)}, {Vr(O[qp],16)}"]
        e = lambda i: f"v_exp_f32 v{s+i}, v{s+i}"
        c = lambda i: f"v_cvt_pk_bf16_f32 v{p+i}, v{s+2*i}, v{s+2*i+1}"
        cp = lambda i: f"v_cvt_pk_bf16_f32 v{pp+i}, v{sn+2*i}, v{sn+2*i+1}"
        sh = [[], [], []]
        if q == 1:
            if kt + 1 < 64:
                r, o = vaddr(kt + 1)
                sh[0] = [f"ds_read_b128 {Vr(VB[(kt+1)&1])}, v{r} offset:{o}"]
                sh[1] = [f"ds_read_b128 {Vr(VB[(kt+1)&1]+4)}, v{r} offset:{o+16}"]
            if kt + 2 < 64:
                r, o = kaddr(kt + 2)
                sh[2] = [f"ds_read_b128 {Vr(KB[kt&1])}, v{r} offset:{o}"]
        else:
            sh[0] = sched.get((kt, 0), [])
            sh[1] = sched.get((kt, 1), [])
            sh[2] = ["WAIT"]
        body = [e(0), e(1), cp(6), e(2), e(3), cp(7), c(0), M[0]] + sh[0] + \
               [e(4), e(5), c(1), e(6), e(7), c(2), M[1]] + sh[1] + \
               [e(8), e(9), c(3), e(10), e(11), c(4), M[2]] + sh[2] + \
               [e(12), e(13), c(5), e(14), e(15)]
        for l in body:
            if l is None:
                continue
            if l == "WAIT":
                if kt == 6:
                    vm.wait(('kv', 1), "lgkmcnt(0)"); A("s_barrier")
                elif kt == 14:
                    vm.wait(('kv', 4), "lgkmcnt(0)"); A("s_barrier")
                elif kt == TF0:
                    vm.wait('f0', "lgkmcnt(0)"); A("s_barrier")
                    A(f"""
                    v_and_b32 v{vF0}, v{vF0}, v{vF0+1}
                    v_and_b32 v{vF0+2}, v{vF0+2}, v{vF0+3}
                    v_and_b32 v{vF0}, v{vF0}, v{vF0+2}
                    v_cmp_eq_u32 vcc, 1, v{vF0}
                    s_cmp_eq_u64 vcc, -1
                    s_cbranch_scc0 F_f0slow
                    F_f0back:
                    """)
                else:
                    A("s_waitcnt lgkmcnt(0)")
            else:
                emit(l)
    pp = P[1]
    for i in (6, 7):
        A(f"v_cvt_pk_bf16_f32 v{pp+i}, v{S[1]+2*i}, v{S[1]+2*i+1}")
    A(f"{MF} {Vr(O[1],16)}, {Vr(VB[1])}, {Vr(pp)}, {Vr(O[1],16)}")
    A(f"{MF} {Vr(O[1],16)}, {Vr(VB[1]+4)}, {Vr(pp+4)}, {Vr(O[1],16)}")
    prof_mark(A, name='p2loop')
    A("s_mov_b32 s44, 0x7e800000")
    for q in range(2):
        o = O[q]
        A(f"v_max3_f32 v6, |v{o}|, |v{o+1}|, |v{o+2}|" if q == 0 else f"v_max3_f32 v6, v6, |v{o}|, |v{o+1}|")
        rest = list(range(3, 8)) if q == 0 else list(range(2, 8))
        while rest:
            if len(rest) >= 2:
                A(f"v_max3_f32 v6, v6, |v{o+rest[0]}|, |v{o+rest[1]}|"); rest = rest[2:]
            else:
                A(f"v_max_f32 v6, v6, |v{o+rest[0]}|"); rest = rest[1:]
    A(f"""
    v_max_f32 v7, v{O[0]+8}, v{O[1]+8}
    v_add_f32 v{P[0]}, v{O[0]+8}, v{O[1]+8}
    v_cmp_gt_f32 vcc, 0x53800000, v7
    v_cmp_o_f32 s[46:47], v{P[0]}, v{P[0]}
    v_cmp_gt_f32 s[48:49], s44, v6
    s_and_b64 s[46:47], s[46:47], vcc
    s_and_b64 s[46:47], s[46:47], s[48:49]
    s_cmp_eq_u64 s[46:47], -1
    s_cbranch_scc0 F_fallback
    F_attn_done:
    s_lshl_b32 s38, s{sQBLK}, 5
    s_add_u32 s38, s38, s{sHEAD}
    s_lshl_b32 s38, s38, 10
    s_add_u32 s38, s38, {OF}
    s_add_u32 s41, s38, 32768
    v_rcp_f32 v6, v{O[0]+8}
    v_rcp_f32 v7, v{O[1]+8}
    """)
    for q in range(2):
        o = O[q]
        for r in range(8):
            A(f"v_mul_f32 v{o+r}, v{6+q}, v{o+r}")
        for r in range(4):
            A(f"v_cvt_pk_bf16_f32 v{o+r}, v{o+2*r}, v{o+2*r+1}")
        vm.issue(f"buffer_store_dwordx4 {Vr(o)}, v{L16}, {S4(WS)}, s{[38,41][q]} offen sc1", 'ost')

    RG = 10
    sWk, sW4, sWt = 44, 45, 46
    vT = [L16, 233, 234, 235]
    A(f"""
    s_mul_i32 s{sWt}, s{sCG}, {7*32768}
    s_add_u32 s{sWt}, s{sWt}, {W13F}
    s_lshl_b32 s31, s3, 10
    s_add_u32 s{sWk}, s{sWt}, s31
    s_lshl_b32 s{sW4}, s3, 12
    s_add_u32 s{sWt}, s{sWt}, s{sW4}
    s_lshl_b32 s47, s{sQB}, 5
    s_add_u32 s47, s47, s{sHEAD}
    s_lshl_b32 s47, s47, 4
    s_add_u32 s47, s47, {F2}
    s_lshr_b32 s48, s{sTT}, 2
    s_lshl_b32 s48, s48, 9
    s_lshl_b32 s31, s3, 7
    s_add_u32 s48, s48, s31
    s_add_u32 s48, s48, {F2}
    s_lshl_b32 s49, s3, 13
    s_add_u32 s49, s49, {OF}
    s_xor_b32 s50, s{sBK}, 1
    s_lshl_b32 s50, s50, 15
    s_add_u32 s50, s50, s49
    s_lshl_b32 s31, s{sBK}, 15
    s_add_u32 s49, s49, s31
    v_and_b32 v3, 7, v{LN}
    v_lshlrev_b32 v3, 4, v3
    """)
    for i in range(1, 4):
        A(f"v_add_u32 v{vT[i]}, {i*(32768-1024)}, v{L16}")
    def dma4(g):
        L = [("s", f"s_add_u32 m0, s{sW4}, {(g % RG)*16384}")]
        if g < 8:
            L.append(("s", f"s_add_u32 s51, s{sWk}, {g*4096}"))
            for i in range(4):
                L.append(("v", f"buffer_load_dwordx4 v{vT[i]}, {S4(WS)}, s51 offen offset:{i*1024} sc1 lds", ('g', g)))
        else:
            t = 4 + (g - 8) // 2
            L.append(("s", f"s_add_u32 s51, s{sWt}, {t*32768 + ((g-8)&1)*16384}"))
            for i in range(4):
                L.append(("v", f"buffer_load_dwordx4 v{L16}, {S4(WS)}, s51 offen offset:{i*1024} sc1 lds", ('g', g)))
        return L
    A("s_barrier")
    G1 = ENV("P3G1", 3)
    for g in range(G1):
        for x in dma4(g):
            emit(x)
    vm.wait('ost')
    A("s_barrier")
    setflag(A, "F_f2", "s47", 6, 7)
    prof_mark(A, name='f2set')
    poll(A, "F_p2", 3, 6, "s48")
    prof_mark(A, name="f2poll")
    vm.done = len(vm.ops)
    OB = 8; AC3 = 72
    for s in range(8):
        for b in range(2):
            vm.issue(f"buffer_load_dwordx4 {Vr(OB+8*s+4*b)}, v{vOF[s>>2]}, {S4(WS)}, s{49+b} offen offset:{(s&3)*1024} sc1", ('o', s))
    RED = 7 * 16384
    for j in range(1, 4):
        A(f"s_xor_b32 s31, s3, {j}")
        A(f"s_mul_i32 s31, s31, 12288")
        A(f"s_add_u32 s31, s31, {RED}")
        A(f"v_add_u32 v{136+j}, s31, v{L16}")
    A(f"""
    s_mul_i32 s31, s3, 12288
    s_add_u32 s31, s31, {RED}
    v_add_u32 v136, s31, v{L16}
    s_lshl_b32 s42, s{sBK}, 5
    s_lshl_b32 s43, s{sNT}, 1
    s_add_u32 s42, s42, s43
    s_lshl_b32 s42, s42, 10
    s_add_u32 s42, s42, {HF}
    """)
    sHF = 42
    for p_ in (0, 1, 4, 5):
        A(f"v_permlane32_swap_b32 v{RX+p_}, v{RX+p_+2}")
    acc = lambda j: AC3 + 16 * j
    fillq = []
    for g in range(G1, 7):
        fillq += dma4(g)
    for s in range(8):
        vm.wait(('o', s))
        order = [1, 2, 3, 0] if s == 7 else [0, 1, 2, 3]
        for j in order:
            n, b = j & 1, j >> 1
            C = "0" if s == 0 else Vr(acc(j), 16)
            A(f"{MF} {Vr(acc(j),16)}, {Vr(WO+8*s+4*n)}, {Vr(OB+8*s+4*b)}, {C}")
            k = 0
            while fillq and (k == 0 or fillq[0][0] == "s"):
                x = fillq.pop(0); emit(x)
                if x[0] == "v":
                    k += 1
    for x in fillq:
        emit(x)
    prof_mark(A, name="p3mm")
    def reduce(acc, va, resid_fn):
        for j in range(1, 4):
            for r in range(4):
                A(f"ds_write_b128 v{va+j}, {Vr(acc(j)+4*r)} offset:{(j-1)*4096+r*1024}")
        resid_fn()
        A("s_waitcnt lgkmcnt(0)")
        A("s_barrier")
        for j in range(1, 4):
            for r in range(4):
                A(f"ds_read_b128 {Vr(acc(j)+4*r)}, v{va} offset:{(j-1)*4096+r*1024}")
        for j in range(1, 4):
            for r in range(4):
                A(f"s_waitcnt lgkmcnt({11-((j-1)*4+r)})")
                for e_ in range(4):
                    A(f"v_add_f32 v{acc(0)+4*r+e_}, v{acc(0)+4*r+e_}, v{acc(j)+4*r+e_}")
    def resid(acc, RES, U):
        for d in range(8):
            A(f"v_lshlrev_b32 v{U+2*d}, 16, v{RES+d}")
            A(f"v_and_b32 v{U+2*d+1}, 0xffff0000, v{RES+d}")
        for r in range(16):
            A(f"v_add_f32 v{acc(0)+r}, v{acc(0)+r}, v{U+r}")
    reduce(acc, 136, lambda: resid(acc, RX, 8))
    a0 = acc(0); PK = acc(1)
    for d in range(8):
        A(f"v_cvt_pk_bf16_f32 v{PK+d}, v{a0+2*d}, v{a0+2*d+1}")
    vm.issue(f"buffer_store_dwordx4 {Vr(PK)}, v{L16}, {S4(WS)}, s{sHF} offen sc1", 'hst')
    vm.issue(f"buffer_store_dwordx4 {Vr(PK+4)}, v{L16}, {S4(WS)}, s{sHF} offen offset:1024 sc1", 'hst')
    A(f"v_add_f32 v8, v{a0}, v{a0+1}")
    A(f"v_mul_f32 v9, v{a0}, v{a0}")
    A(f"v_add_f32 v10, v{a0+2}, v{a0+3}")
    A(f"v_mul_f32 v11, v{a0+1}, v{a0+1}")
    for r in range(2, 16):
        A(f"v_fma_f32 v{9 + 2*(r&1)}, v{a0+r}, v{a0+r}, v{9 + 2*(r&1)}")
        if r >= 4:
            A(f"v_add_f32 v{8 + 2*(r&1)}, v{8 + 2*(r&1)}, v{a0+r}")
    A(f"""
    v_add_f32 v8, v8, v10
    v_add_f32 v9, v9, v11
    v_and_b32 v5, 31, v{LN}
    v_lshrrev_b32 v6, 5, v{LN}
    v_lshlrev_b32 v12, 7, v5
    v_lshl_add_u32 v13, v6, 6, v12
    v_lshl_add_u32 v12, v6, 2, v12
    v_permlane32_swap_b32 v8, v9
    s_lshl_b32 s47, s{sBK}, 12
    s_lshl_b32 s48, s{sNT}, 3
    s_add_u32 s47, s47, s48
    s_add_u32 s47, s47, {ST}
    v_add_f32 v8, v8, v9
    """)
    vm.issue(f"buffer_store_dword v8, v12, {S4(WS)}, s47 offen sc1", 'hst')
    sB4, sH, sST, sG = 47, 48, 49, 50
    A(f"""
    s_lshl_b32 s31, s{sTT}, 3
    s_add_u32 s31, s31, s{sCT}
    s_lshl_b32 s31, s31, 4
    s_add_u32 s31, s31, {F3}
    s_lshl_b32 s{sB4}, s{sTB4}, 2
    s_add_u32 s{sB4}, s{sB4}, s3
    s_lshl_b32 s{sH}, s{sB4}, 15
    s_add_u32 s{sH}, s{sH}, {HF}
    s_lshl_b32 s{sST}, s{sB4}, 12
    s_add_u32 s{sST}, s{sST}, {ST}
    s_mul_i32 s{sG}, s{sB4}, {112*1024}
    s_mul_i32 s43, s{sCG}, 7168
    s_add_u32 s{sG}, s{sG}, s43
    s_add_u32 s{sG}, s{sG}, {GF}
    s_lshr_b32 s43, s{sB4}, 1
    s_lshl_b32 s43, s43, 7
    s_add_u32 s43, s43, {F3}
    v_add_u32 v10, 4096, v{L16}
    v_add_u32 v11, 65536, v{L16}
    v_add_u32 v14, 131072, v{L16}
    v_mov_b32 v7, v{vT[1]}
    v_mov_b32 v8, v{vT[2]}
    v_mov_b32 v9, v{vT[3]}
    """)
    vT[1:] = [7, 8, 9]
    vm.wait('hst')
    A("s_barrier")
    setflag(A, "F_f3", "s31", 4, 5)
    prof_mark(A, name='f3set')
    poll(A, "F_p3", 3, 4, "s43")
    prof_mark(A, name="f3poll")
    vm.done = len(vm.ops)
    H = 128
    ACC = [16 + 16 * i for i in range(5)]
    NWB = 6
    WB4 = [96 + 4 * i for i in range(NWB)]
    MU = 120
    vRA, vRB = 124, 125
    TMP = [126, 127]
    vH = 6
    def hload(ks):
        L = []
        if ks and ks % 8 == 0:
            L.append(("s", f"s_add_u32 s{sH}, s{sH}, 8192"))
        L.append(("v", f"buffer_load_dwordx4 {Vr(H+4*ks)}, v{[L16,10][(ks>>2)&1]}, {S4(WS)}, s{sH} offen offset:{(ks&3)*1024} sc1", ('h', ks)))
        return L
    HPRE = ENV("P4HPRE", 12)
    for ks in range(HPRE):
        for x in hload(ks):
            emit(x)
    S4r = ACC[4]
    fill = []
    for ks in range(HPRE, 32):
        fill += hload(ks)
    for i in range(4):
        fill.append(("v", f"buffer_load_dwordx4 {Vr(S4r+4*i)}, v13, {S4(WS)}, s{sST} offen offset:{16*i} sc1", 'st'))
    for g in range(7, 10):
        fill += dma4(g)
    st = []
    R = S4r
    st += [f"v_add_f32 v{R+2*i}, v{R+2*i}, v{R+2*i+8}" for i in range(4)]
    st += [f"v_add_f32 v{R+2*i+1}, v{R+2*i+1}, v{R+2*i+9}" for i in range(4)]
    st += [f"v_add_f32 v{R}, v{R}, v{R+4}", f"v_add_f32 v{R+1}, v{R+1}, v{R+5}",
           f"v_add_f32 v{R+2}, v{R+2}, v{R+6}", f"v_add_f32 v{R+3}, v{R+3}, v{R+7}",
           f"v_add_f32 v{R}, v{R}, v{R+2}", f"v_add_f32 v{R+1}, v{R+1}, v{R+3}",
           f"v_mov_b32 v{R+2}, v{R}", f"v_mov_b32 v{R+3}, v{R+1}",
           f"v_cmp_eq_u32 vcc, 0, v{vH}", "s_nop 0",
           f"v_permlane32_swap_b32 v{R+2}, v{R}", f"v_permlane32_swap_b32 v{R+3}, v{R+1}",
           f"v_add_f32 v{R}, v{R}, v{R+2}", f"v_add_f32 v{R+1}, v{R+1}, v{R+3}",
           f"v_mul_f32 v{R}, {1.0/512}, v{R}", f"v_mul_f32 v{R+1}, {1.0/512}, v{R+1}",
           f"v_fma_f32 v{R+1}, -v{R}, v{R}, v{R+1}", f"v_max_f32 v{R+1}, 0, v{R+1}",
           f"v_add_f32 v{vRB}, 0x3727c5ac, v{R+1}", f"v_rsq_f32 v{vRA}, v{vRB}",
           f"v_cndmask_b32 v{R}, 0, v{R}, vcc", f"v_sub_f32 v{R}, 0, v{R}",
           f"v_mul_f32 v{vRA}, {-LOG2E}, v{vRA}",
           f"v_and_b32 v{R+4}, 0xffff0000, v{R}", f"v_sub_f32 v{R+6}, v{R}, v{R+4}",
           f"v_and_b32 v{R+5}, 0xffff0000, v{R+6}", f"v_sub_f32 v{R+6}, v{R+6}, v{R+5}",
           f"v_perm_b32 v{MU}, v{R+5}, v{R+4}, s{sPERM}", f"v_perm_b32 v{MU+1}, v{R+6}, v{R+4}, s{sPERM}",
           f"v_perm_b32 v{MU+2}, v{R+4}, v{R+5}, s{sPERM}", f"v_mov_b32 v{MU+3}, 0"]
    def epi(t, a):
        L = []
        for j in range(0, 8, 2):
            t0, t1 = TMP
            L += [f"v_mul_f32 v{t0}, v{vRA}, v{a+j}", f"v_mul_f32 v{t1}, v{vRA}, v{a+j+1}",
                  f"v_exp_f32 v{t0}, v{t0}", f"v_mul_f32 v{a+j}, v{a+j}, v{a+8+j}",
                  f"v_exp_f32 v{t1}, v{t1}", f"v_mul_f32 v{a+j+1}, v{a+j+1}, v{a+8+j+1}",
                  f"v_fma_f32 v{t0}, v{t0}, v{vRB}, v{vRB}", f"v_fma_f32 v{t1}, v{t1}, v{vRB}, v{vRB}",
                  f"v_rcp_f32 v{t0}, v{t0}", f"v_rcp_f32 v{t1}, v{t1}",
                  f"v_mul_f32 v{a+j}, v{a+j}, v{t0}", f"v_mul_f32 v{a+j+1}, v{a+j+1}, v{t1}",
                  f"v_cvt_pk_bf16_f32 v{a+8+j//2}, v{a+j}, v{a+j+1}"]
        L.append(("v", f"buffer_store_dwordx4 {Vr(a+8)}, v{L16 if t < 4 else 10}, {S4(WS)}, s{sG} offen offset:{(t&3)*1024} sc1", ('gst', t)))
        return L
    slot = {0: 0, 1: 1, 2: 2, 3: 3, 4: 4, 5: 0, 6: 1}
    order = [(t, ks) for ks in range(32) for t in range(4)] + [(t, ks) for t in range(4, 7) for ks in range(32)]
    NF = len(order)
    seq = []
    for f, (t, ks) in enumerate(order):
        seq.append(('w', f, t, ks))
        if ks == 31:
            seq.append(('mu', None, t, None))
    def rd(f):
        o = (f % (RG * 16)) * 1024
        return f"ds_read_b128 {Vr(WB4[f % NWB])}, v{[L16, 11, 14][o >> 16]} offset:{o & 65535}"
    AH = NWB - 1
    for f in range(AH):
        A(rd(f))
    BUD = ENV("P4BUD", 20)
    for idx, (kind, f, t, ks) in enumerate(seq):
        a = ACC[slot[t]]
        if kind == 'w':
            fr = f + AH
            if fr == 7 * 16:
                vm.wait(('g', 9))
                A("s_barrier")
                pre_ = []
                for g in range(10, 14):
                    pre_ += dma4(g)
                fill = pre_ + fill
            if fr == 10 * 16:
                vm.wait(('g', 13))
                A("s_barrier")
            if f < 128 and t == 0:
                vm.wait(('h', ks))
            if f % 2 == 0:
                nout = min(f + AH, NF) - 1 - min(f + 1, NF - 1)
                A(f"s_waitcnt lgkmcnt({nout})")
            C = "0" if ks == 0 else Vr(a, 16)
            A(f"{MF} {Vr(a,16)}, {Vr(WB4[f % NWB])}, {Vr(H+4*ks)}, {C}")
            if fr < NF:
                A(rd(fr))
            if f in (63, 127):
                prof_mark(A, name=f"p4_{f}")
            if f == 60:
                fill.append(("w", 'st'))
                fill += st
        else:
            A(f"{MF} {Vr(a,16)}, {Ar(224+4*t)}, {Vr(MU)}, {Vr(a,16)}")
            fill.append(("delay", idx + 2))
            fill += epi(t, a)
        budget = BUD
        while fill and budget > 0:
            x = fill[0]
            if isinstance(x, tuple) and x[0] == "delay":
                if idx < x[1]:
                    break
                fill.pop(0); continue
            if isinstance(x, tuple) and x[0] == "w":
                vm.wait(x[1]); fill.pop(0); continue
            cost = 4
            if isinstance(x, str) and x[:5] in ("v_exp", "v_rcp", "v_rsq", "v_per"):
                cost = 8
            if isinstance(x, tuple) and x[0] == "v":
                cost = 12
            if isinstance(x, tuple) and x[0] == "s":
                cost = 2
            if cost > budget and budget < BUD:
                break
            budget -= cost
            fill.pop(0)
            emit(x)
        if idx + 1 < len(seq) and seq[idx + 1][0] == 'w' and seq[idx + 1][3] == 0 and seq[idx + 1][2] >= 4:
            tn = seq[idx + 1][2]
            if tn >= 5:
                assert not any(isinstance(x, tuple) and x[0] == 'v' and x[2] == ('gst', tn - 5) for x in fill), "acc slot not free"
            else:
                assert not any(isinstance(x, str) and x == st[-1] for x in fill), "stats not done"
    prof_mark(A, name='p4loop')
    for x in fill:
        if not (isinstance(x, tuple) and x[0] in ("delay", "w")):
            emit(x)
    sG0, sG1 = 44, 45
    A(f"""
    s_lshl_b32 s31, s{sTB4}, 4
    s_add_u32 s31, s31, s{sCG}
    s_lshl_b32 s31, s31, 4
    s_add_u32 s31, s31, {F4}
    s_lshr_b32 s43, s{sTT}, 1
    s_lshl_b32 s43, s43, 8
    s_lshl_b32 s46, s3, 6
    s_add_u32 s43, s43, s46
    s_add_u32 s43, s43, {F4}
    s_mul_i32 s46, s3, {28*1024}
    s_add_u32 s46, s46, {GF}
    s_mul_i32 s{sG0}, s{sBK}, {112*1024}
    s_add_u32 s{sG0}, s{sG0}, s46
    s_xor_b32 s47, s{sBK}, 1
    s_mul_i32 s{sG1}, s47, {112*1024}
    s_add_u32 s{sG1}, s{sG1}, s46
    v_and_b32 v3, 3, v{LN}
    v_lshlrev_b32 v3, 4, v3
    v_and_b32 v5, 31, v{LN}
    v_lshlrev_b32 v7, 10, v5
    v_lshl_add_u32 v7, v6, 4, v7
    """)
    RES = 248
    vm.issue(f"buffer_load_dwordx4 {Vr(RES)}, v{L16}, {S4(WS)}, s{sHF} offen sc1", 'res')
    vm.issue(f"buffer_load_dwordx4 {Vr(RES+4)}, v{L16}, {S4(WS)}, s{sHF} offen offset:1024 sc1", 'res')
    for j in range(1, 4):
        A(f"s_xor_b32 s46, s3, {j}")
        A(f"s_mul_i32 s46, s46, 12288")
        A(f"v_add_u32 v{12+j}, s46, v{L16}")
    A("s_mul_i32 s46, s3, 12288")
    A(f"v_add_u32 v12, s46, v{L16}")
    vm.wait(('gst', 6))
    A("s_barrier")
    setflag(A, "F_f4", "s31", 4, 5)
    prof_mark(A, name='f4set')
    poll(A, "F_p4", 3, 4, "s43")
    prof_mark(A, name="f4poll")
    vm.done = len(vm.ops)
    NB = 21
    AC5 = 16
    GB = 80
    acc5 = lambda j: AC5 + 16 * j
    gb = lambda s, b: GB + 8 * (s % NB) + 4 * b
    assert GB + 8 * NB <= RES
    def gload(s):
        if s and s % 8 == 0:
            A(f"s_add_u32 s{sG0}, s{sG0}, 8192")
            A(f"s_add_u32 s{sG1}, s{sG1}, 8192")
        for b in range(2):
            vm.issue(f"buffer_load_dwordx4 {Vr(gb(s,b))}, v{[L16,10][(s>>2)&1]}, {S4(WS)}, s{[sG0,sG1][b]} offen offset:{(s&3)*1024} sc1", ('gl', s))
    GPRE = ENV("P5PRE", 8)
    nl = 0
    for s in range(GPRE):
        gload(s); nl += 1
    for s in range(28):
        vm.wait(('gl', s))
        order = [1, 2, 3, 0] if s == 27 else [0, 1, 2, 3]
        for jj, j in enumerate(order):
            n, b = j & 1, j >> 1
            C = "0" if s == 0 else Vr(acc5(j), 16)
            A(f"{MF} {Vr(acc5(j),16)}, {Ar(8*s+4*n)}, {Vr(gb(s,b))}, {C}")
            if jj in (0, 2) and nl < 28 and nl < s + NB:
                gload(nl); nl += 1
    prof_mark(A, name='p5loop')
    reduce(acc5, 12, lambda: resid(acc5, RES, GB))
    a0 = acc5(0); PK = acc5(1)
    for d in range(8):
        A(f"v_cvt_pk_bf16_f32 v{PK+d}, v{a0+2*d}, v{a0+2*d+1}")
    for p_ in (0, 1, 4, 5):
        A(f"v_permlane32_swap_b32 v{PK+p_}, v{PK+p_+2}")
    A(f"buffer_store_dwordx4 {Vr(PK)}, v7, {S4(OS)}, s{sRX} offen")
    A(f"buffer_store_dwordx4 {Vr(PK+4)}, v7, {S4(OS)}, s{sRX} offen offset:32")
    prof_end(A, 0, 4)
    A.label("F_exit")
    A("s_endpgm")
    A.label("F_f0slow")
    A(f"""
    buffer_load_dwordx4 {Vr(vF0)}, v{L16}, {S4(WS)}, s43 offen sc1
    s_waitcnt vmcnt(0)
    v_and_b32 v{vF0}, v{vF0}, v{vF0+1}
    v_and_b32 v{vF0+2}, v{vF0+2}, v{vF0+3}
    v_and_b32 v{vF0}, v{vF0}, v{vF0+2}
    v_cmp_eq_u32 vcc, 1, v{vF0}
    s_cmp_eq_u64 vcc, -1
    s_cbranch_scc1 F_f0back
    s_cmp_eq_u32 s{sTO}, 0
    s_cbranch_scc1 F_f0back
    s_sub_u32 s{sTO}, s{sTO}, 1
    s_sleep 1
    s_branch F_f0slow
    """)
    A.label("F_fallback")
    A(f"""
    v_mov_b32 v6, 0xff800000
    v_mov_b32 v7, 0xff800000
    v_mov_b32 v{P[0]}, v{vKa}
    s_mov_b32 s31, 0
    F_maxloop:
    ds_read_b128 {Vr(KB[0])}, v{P[0]}
    v_add_u32 v{P[0]}, {TS}, v{P[0]}
    s_waitcnt lgkmcnt(0)
    """)
    for q in range(2):
        A(f"{MF} {Vr(S[q],16)}, {Vr(KB[0])}, {Vr(Q[q])}, 0")
    for q in range(2):
        for r in range(0, 16, 2):
            A(f"v_max3_f32 v{6+q}, v{6+q}, v{S[q]+r}, v{S[q]+r+1}")
    A("""
    s_add_u32 s31, s31, 1
    s_cmp_lt_u32 s31, 64
    s_cbranch_scc1 F_maxloop
    """)
    halfsum(A, [6, 7], P[0], op="v_max_f32")
    for q in range(2):
        for r in range(16):
            A(f"v_sub_f32 v{N[q]+r}, 0, v{6+q}")
            A(f"v_mov_b32 v{O[q]+r}, 0")
    A(f"""
    v_mov_b32 v6, v{vKa}
    v_mov_b32 v7, v{vVa}
    s_mov_b32 s31, 0
    F_fbloop:
    ds_read_b128 {Vr(KB[0])}, v6
    ds_read_b128 {Vr(VB[0])}, v7
    ds_read_b128 {Vr(VB[0]+4)}, v7 offset:16
    v_add_u32 v6, {TS}, v6
    v_add_u32 v7, {TS}, v7
    s_waitcnt lgkmcnt(0)
    """)
    for q in range(2):
        A(f"{MF} {Vr(S[q],16)}, {Vr(KB[0])}, {Vr(Q[q])}, {Vr(N[q],16)}")
    for q in range(2):
        for r in range(16):
            A(f"v_exp_f32 v{S[q]+r}, v{S[q]+r}")
        for r in range(8):
            A(f"v_cvt_pk_bf16_f32 v{P[q]+r}, v{S[q]+2*r}, v{S[q]+2*r+1}")
        A(f"{MF} {Vr(O[q],16)}, {Vr(VB[0])}, {Vr(P[q])}, {Vr(O[q],16)}")
        A(f"{MF} {Vr(O[q],16)}, {Vr(VB[0]+4)}, {Vr(P[q]+4)}, {Vr(O[q],16)}")
    A("""
    s_add_u32 s31, s31, 1
    s_cmp_lt_u32 s31, 64
    s_nop 7
    s_nop 3
    s_cbranch_scc1 F_fbloop
    s_branch F_attn_done
    """)
    return ("fused_kernel", A.finish("fused"), 256, 256, 256, 163840)

if __name__ == '__main__':
    build([fused()], sys.argv[1] if len(sys.argv) > 1 else 'sequential_preLN__softmax_full_mha__glu_gated_swiglu__prompt.s')
```

```python
import sys, os
from asm import *
from layout import *
from gen import split3, pack_c, pack_m, halfsum, ONES, PERMHI, build
from kern3 import VM

ENV = lambda k, d: int(os.environ.get(k, str(d)))
TS = 2080
LOG2E = 1.4426950408889634

WS, XS, OS, SA, SP1, DS, SP2 = 4, 8, 12, 16, 20, 24, 64
sONES, sPERM, sTO = 28, 29, 30
sXCD, sIDX = 52, 53
def S4(b): return f"s[{b}:{b+3}]"
def Vr(b, n=4): return f"v[{b}:{b+n-1}]"
def Ar(b, n=4): return f"a[{b}:{b+n-1}]"
MF = "v_mfma_f32_32x32x16_bf16"

def srd(A, s, lo, size):
    A(f"s_mov_b32 s{s}, s{lo}")
    A(f"s_mov_b32 s{s+1}, s{lo+1}")
    A(f"s_mov_b32 s{s+2}, {size}")
    A(f"s_mov_b32 s{s+3}, 0x20000")

def poll(A, name, vaddr, vtmp, soff, srdb=WS):
    A(f"""
    {name}:
    buffer_load_dword v{vtmp}, v{vaddr}, {S4(srdb)}, {soff} offen sc1
    s_waitcnt vmcnt(0)
    v_cmp_eq_u32 vcc, 1, v{vtmp}
    s_cmp_eq_u64 vcc, -1
    s_cbranch_scc1 {name}_ok
    s_cmp_eq_u32 s{sTO}, 0
    s_cbranch_scc1 {name}_ok
    s_sub_u32 s{sTO}, s{sTO}, 1
    s_sleep 1
    s_branch {name}
    {name}_ok:
    """)

def setflag(A, name, soff, v0, v1, wave=0, srdb=WS):
    A(f"""
    s_cmp_lg_u32 s3, {wave}
    s_cbranch_scc1 {name}
    v_mov_b32 v{v0}, 0
    v_mov_b32 v{v1}, 1
    s_mov_b64 exec, 1
    buffer_store_dword v{v1}, v{v0}, {S4(srdb)}, {soff} offen sc1
    s_mov_b64 exec, -1
    {name}:
    """)

def fused():
    A = Asm()
    vm = VM(A)
    L16, LN = 1, 2
    NS = 5
    WREG = 4 * NS * 4096
    CSX = WREG + NS * 12288
    PCS = CSX + 1536
    accQ, accK, accV = 32, 48, 64
    XB = [80, 84]; WB = [88, 100]
    vSum, vSq, vC = 112, 113, [114, 115, 116]
    vXa, vWa = [8, 9, 10, 11], [12, 13, 14, 15]
    vOX, vOW = [16, 17, 18, 19], [20, 21, 22]
    vPO, vDBG = 24, 25
    sTB, sHP, sBLK = 54, 55, 56
    sX, sWq, sMX, sMW = 57, 58, 59, 60
    sPO, sPS, sPD = 61, 62, 63
    prof_start(A)
    A(f"""
    s_load_dwordx16 s[32:47], s[0:1], 0
    s_load_dwordx4 s[48:51], s[0:1], 64
    s_cmp_ge_u32 s2, 256
    s_cbranch_scc1 F_exit
    v_lshrrev_b32 v3, 6, v0
    v_and_b32 v{LN}, 63, v0
    v_readfirstlane_b32 s3, v3
    v_lshlrev_b32 v{L16}, 4, v{LN}
    s_and_b32 s{sXCD}, s2, 7
    s_lshr_b32 s{sIDX}, s2, 3
    s_lshr_b32 s{sTB}, s{sXCD}, 1
    s_lshl_b32 s{sTB}, s{sTB}, 2
    s_lshr_b32 s31, s{sIDX}, 3
    s_add_u32 s{sTB}, s{sTB}, s31
    s_and_b32 s{sHP}, s{sXCD}, 1
    s_lshl_b32 s{sHP}, s{sHP}, 3
    s_and_b32 s31, s{sIDX}, 7
    s_add_u32 s{sHP}, s{sHP}, s31
    s_lshl_b32 s{sBLK}, s{sTB}, 2
    s_add_u32 s{sBLK}, s{sBLK}, s3
    v_lshrrev_b32 v3, 3, v{LN}
    v_lshrrev_b32 v4, 4, v{LN}
    v_and_b32 v5, 7, v{LN}
    """)
    for i in range(4):
        A(f"v_add_u32 v6, {4*i}, v4")
        A(f"v_and_b32 v6, 7, v6")
        A(f"v_xor_b32 v6, v6, v5")
        A(f"v_lshlrev_b32 v6, 4, v6")
        A(f"v_lshl_add_u32 v6, v3, 10, v6")
        A(f"v_add_u32 v{vOX[i]}, {7*1024*i}, v6")
    for i in range(3):
        A(f"v_add_u32 v6, {64*i}, v{LN}")
        A(f"v_mul_u32_u24 v7, 171, v6")
        A(f"v_lshrrev_b32 v7, 11, v7")
        A(f"v_mul_u32_u24 v23, 12, v7")
        A(f"v_sub_u32 v6, v6, v23")
        A(f"v_mul_u32_u24 v7, 3072, v7")
        A(f"v_lshrrev_b32 v23, 2, v6")
        A(f"v_lshl_add_u32 v7, v23, 10, v7")
        A(f"v_and_b32 v6, 3, v6")
        A(f"v_lshl_add_u32 v7, v6, 4, v7")
        A(f"v_subrev_u32 v{vOW[i]}, {1024*i}, v7")
    A(f"""
    s_lshl_b32 s{sX}, s{sBLK}, 15
    s_mul_i32 s{sWq}, s3, {16*3072}
    s_lshl_b32 s31, s{sHP}, 6
    s_add_u32 s{sWq}, s{sWq}, s31
    s_mul_i32 s{sMX}, s3, {NS*4096}
    s_mul_i32 s{sMW}, s3, 3072
    s_add_u32 s{sMW}, s{sMW}, {WREG}
    s_mov_b32 s{sONES}, {ONES}
    s_mov_b32 s{sPERM}, {PERMHI}
    s_mov_b32 s{sTO}, 60000
    s_waitcnt lgkmcnt(0)
    """)
    srd(A, XS, 32, 2048 * 1024)
    srd(A, SA, 34, 512 * 3072)
    srd(A, WS, 50, WS_BYTES)
    def dma1(c):
        L = []
        sl = c % NS
        L.append(("s", f"s_add_u32 m0, s{sMX}, {sl*4096}"))
        for i in range(4):
            L.append(("v", f"buffer_load_dwordx4 v{vOX[i]}, {S4(XS)}, s{sX} offen offset:{i*1024} lds", ('c', c)))
        L.append(("s", f"s_add_u32 m0, s{sMW}, {sl*12288}"))
        L.append(("s", f"s_add_u32 s{sX}, s{sX}, 128"))
        for i in range(3):
            L.append(("v", f"buffer_load_dwordx4 v{vOW[i]}, {S4(SA)}, s{sWq} offen offset:{i*1024} lds", ('c', c)))
        L.append(("s", f"s_add_u32 s{sWq}, s{sWq}, {64*3072}"))
        return L
    def emit(x):
        if isinstance(x, str):
            A(x)
        elif x[0] == "v":
            vm.issue(x[1], x[2])
        else:
            A(x[1])
    PRO = ENV("P1PRO", 3)
    for x in dma1(0) + dma1(1):
        emit(x)
    A(f"""
    s_cmp_lg_u32 s2, 0
    s_cbranch_scc1 F_noz
    v_mov_b32 v4, 0
    v_mov_b32 v5, 0
    v_mov_b32 v6, 0
    v_mov_b32 v7, 0
    s_mul_i32 s31, s3, 5120
    s_add_u32 s31, s31, {FL}
    """)
    for i in range(4):
        A(f"buffer_store_dwordx4 v[4:7], v{L16}, {S4(WS)}, s31 offen offset:{1024*i} sc1")
    A(f"s_add_u32 s31, s31, 1024")
    A(f"buffer_store_dwordx4 v[4:7], v{L16}, {S4(WS)}, s31 offen offset:3072 sc1")
    A("s_nop 1")
    A.label("F_noz")
    srd(A, OS, 46, 2048 * 1024)
    srd(A, DS, 48, 256)
    A(f"""
    s_cmp_ge_u32 s2, 112
    s_cbranch_scc1 F_prB
    """)
    srd(A, SP1, 40, 512 * 3584)
    srd(A, SP2, 42, 512 * 3584)
    A(f"""
    v_lshrrev_b32 v{vPO}, 1, v{LN}
    v_mul_u32_u24 v{vPO}, 3584, v{vPO}
    v_and_b32 v3, 1, v{LN}
    v_lshl_add_u32 v{vPO}, v3, 4, v{vPO}
    s_mul_i32 s{sPO}, s3, {128*3584}
    s_lshl_b32 s31, s2, 5
    s_add_u32 s{sPO}, s{sPO}, s31
    s_mov_b32 s{sPS}, {32*3584-1024}
    s_lshl_b32 s{sPD}, s2, 15
    s_lshl_b32 s31, s3, 13
    s_add_u32 s{sPD}, s{sPD}, s31
    s_add_u32 s{sPD}, s{sPD}, {W13F}
    s_branch F_prE
    F_prB:
    s_cmp_ge_u32 s2, 224
    s_cselect_b32 s{SP1}, s36, s44
    s_cselect_b32 s{SP1+1}, s37, s45
    s_mov_b32 s{SP1+2}, {1792*1024}
    s_mov_b32 s32, 112
    s_mov_b32 s33, 112
    s_mov_b32 s34, {W2F}
    s_cmov_b32 s{SP1+2}, {512*1024}
    s_cmov_b32 s32, 224
    s_cmov_b32 s33, 32
    s_cmov_b32 s34, {WOF}
    s_mov_b32 s{SP1+3}, 0x20000
    """)
    srd(A, SP2, 44, 0)
    A(f"""
    s_sub_u32 s32, s2, s32
    s_and_b32 s35, s32, 15
    s_lshr_b32 s32, s32, 4
    s_lshl_b32 s32, s32, 2
    s_add_u32 s32, s32, s3
    s_lshl_b32 s{sPO}, s32, 16
    s_lshl_b32 s31, s35, 6
    s_add_u32 s{sPO}, s{sPO}, s31
    s_mov_b32 s{sPS}, {15*1024}
    s_mul_i32 s{sPD}, s35, s33
    s_lshl_b32 s31, s32, 2
    s_add_u32 s{sPD}, s{sPD}, s31
    s_lshl_b32 s{sPD}, s{sPD}, 10
    s_add_u32 s{sPD}, s{sPD}, s34
    v_lshrrev_b32 v{vPO}, 2, v{LN}
    v_lshlrev_b32 v{vPO}, 10, v{vPO}
    v_and_b32 v3, 3, v{LN}
    v_lshl_add_u32 v{vPO}, v3, 4, v{vPO}
    F_prE:
    """)
    def dmap():
        L = []
        for i in range(4):
            L.append(("s", f"s_add_u32 m0, s{sMX}, {3*4096}"))
            L.append(("v", f"buffer_load_dwordx4 v{vPO}, {S4(SP1)}, s{sPO} offen offset:{i*1024} lds", 'prep'))
            L.append(("s", f"s_add_u32 m0, s{sMX}, {4*4096}"))
            L.append(("v", f"buffer_load_dwordx4 v{vPO}, {S4(SP2)}, s{sPO} offen offset:{i*1024} lds", 'prep'))
            if i < 3:
                L.append(("s", f"s_add_u32 s{sPO}, s{sPO}, s{sPS}"))
        return L
    A(f"""
    v_and_b32 v3, 31, v{LN}
    v_lshrrev_b32 v4, 5, v{LN}
    v_bfe_u32 v5, v3, 1, 3
    v_lshlrev_b32 v6, 7, v3
    v_add_u32 v6, s{sMX}, v6
    v_bfe_u32 v7, v{LN}, 2, 2
    v_lshl_add_u32 v7, v4, 3, v7
    v_mul_u32_u24 v7, 192, v7
    v_bfe_u32 v23, v{LN}, 4, 1
    v_lshl_add_u32 v7, v23, 5, v7
    v_and_b32 v23, 3, v{LN}
    v_lshl_add_u32 v7, v23, 3, v7
    v_add_u32 v7, {WREG}, v7
    """)
    for i in range(4):
        A(f"s_add_u32 s35, s3, {i}")
        A(f"s_and_b32 s35, s35, 3")
        A(f"s_lshl_b32 s36, s35, 1")
        A(f"v_add_u32 v23, s36, v4")
        A(f"v_xor_b32 v23, v23, v5")
        A(f"v_lshl_add_u32 v{vXa[i]}, v23, 4, v6")
        A(f"s_mul_i32 s36, s35, 3072")
        A(f"v_add_u32 v{vWa[i]}, s36, v7")
    for r in list(range(accQ, accQ + 48)) + [vSum, vSq] + vC:
        A(f"v_mov_b32 v{r}, 0")
    for c in range(2, PRO):
        for x in dma1(c):
            emit(x)
    def reads1(c, i, b):
        sl = c % NS
        L = [f"ds_read_b128 {Vr(XB[b])}, v{vXa[i]} offset:{sl*4096}"]
        for seg in range(3):
            for jj in range(2):
                r = WB[b] + 4 * seg + 2 * jj
                L.append(f"ds_read_b64_tr_b16 v[{r}:{r+1}], v{vWa[i]} offset:{sl*12288+jj*768+seg*64}")
        return L
    def compute1(i, b, extra):
        X = Vr(XB[b])
        W = [Vr(WB[b] + 4 * s) for s in range(3)]
        M = [f"{MF} {Vr(accQ,16)}, {W[0]}, {X}, {Vr(accQ,16)}",
             f"{MF} {Vr(accK,16)}, {W[1]}, {X}, {Vr(accK,16)}",
             f"{MF} {Vr(accV,16)}, {X}, {W[2]}, {Vr(accV,16)}"]
        n = len(extra)
        per = [(n + 2) // 3, (n + 1) // 3, n // 3]
        p = 0
        for m in range(3):
            A(M[m])
            for l in extra[p:p + per[m]]:
                emit(l)
            p += per[m]
        for d in range(4):
            A(f"v_dot2c_f32_bf16 v{vSum}, s{sONES}, v{XB[b]+d}")
            A(f"v_dot2c_f32_bf16 v{vSq}, v{XB[b]+d}, v{XB[b]+d}")
        if i == 0:
            for d in range(4):
                for s in range(3):
                    A(f"v_dot2c_f32_bf16 v{vC[s]}, s{sONES}, v{WB[b]+4*s+d}")
    prof_mark(A, name='pro')
    vm.wait(('c', 0))
    A("s_barrier")
    for l in reads1(0, 0, 0):
        A(l)
    pend = {c: [] for c in range(8)}
    for c in range(PRO, 8):
        pend[max(c - PRO, c - NS + 1)] += dma1(c)
    pend[5] += dmap()
    pend[6] += [f"v_mov_b32 v{vDBG}, 0", ("v", f"buffer_load_dword v{vDBG}, v{vDBG}, {S4(DS)}, 0 offen sc1", 'dbg')]
    step = 0
    for c in range(8):
        q = pend[c]
        for i in range(4):
            b = step & 1
            A("s_waitcnt lgkmcnt(0)")
            extra = []
            if i < 3:
                extra += reads1(c, i + 1, b ^ 1)
            elif c < 7:
                vm.wait(('c', c + 1))
                A("s_barrier")
                if c + 1 in (1, 3, 5, 7):
                    prof_mark(A, name=f"c{c+1}")
                if c + 1 == 2:
                    A("s_cmp_lg_u32 s2, 0")
                    A("s_cbranch_scc1 F_nopub")
                    setflag(A, "F_nopub2", "0", 26, 27, srdb=DS)
                    A.label("F_nopub")
                extra += reads1(c + 1, 0, b ^ 1)
            k = (len(q) + (3 - i)) // (4 - i)
            extra += q[:k]; q = q[k:]
            compute1(i, b, extra)
            step += 1
    prof_mark(A, name='p1loop')
    halfsum(A, [vSum, vSq] + vC, 80)
    A(f"""
    v_lshlrev_b32 v88, 4, v3
    v_add_u32 v88, {CSX}, v88
    s_lshl_b32 s35, s3, 2
    v_add_u32 v89, s35, v88
    """)
    for s in range(3):
        A(f"ds_write_b32 v89, v{vC[s]} offset:{512*s}")
    A(f"""
    v_mul_f32 v{vSum}, {1.0/512}, v{vSum}
    v_mul_f32 v{vSq}, {1.0/512}, v{vSq}
    v_fma_f32 v{vSq}, -v{vSum}, v{vSum}, v{vSq}
    v_max_f32 v{vSq}, 0, v{vSq}
    v_add_f32 v{vSq}, 0x3727c5ac, v{vSq}
    v_rsq_f32 v{vSq}, v{vSq}
    v_lshlrev_b32 v90, 2, v3
    v_add_u32 v90, s{sMX}, v90
    v_lshlrev_b32 v91, 4, v4
    v_add_u32 v91, s{sMX}, v91
    v_cmp_eq_u32 vcc, 0, v4
    ds_write_b32 v90, v{vSq}
    v_cndmask_b32 v{vSum}, 0, v{vSum}, vcc
    v_sub_f32 v{vSum}, 0, v{vSum}
    s_waitcnt lgkmcnt(0)
    s_barrier
    """)
    for s in range(3):
        A(f"ds_read_b128 {Vr(96+4*s)}, v88 offset:{512*s}")
    for g in range(4):
        A(f"ds_read_b128 {Vr(120+4*g)}, v91 offset:{32*g}")
    split3(A, vSum, 80, 81, 82)
    pack_m(A, 84, 80, 81, 82, sPERM)
    for s in range(3):
        A(f"s_waitcnt lgkmcnt({6-s})")
        r = 96 + 4 * s
        A(f"v_add_f32 v{r}, v{r}, v{r+1}")
        A(f"v_add_f32 v{r+2}, v{r+2}, v{r+3}")
        A(f"v_add_f32 v{r}, v{r}, v{r+2}")
        split3(A, r, 80, 81, 82)
        pack_c(A, r, 80, 81, 82, sPERM)
    A(f"{MF} {Vr(accQ,16)}, v[96:99], v[84:87], {Vr(accQ,16)}")
    A(f"{MF} {Vr(accK,16)}, v[100:103], v[84:87], {Vr(accK,16)}")
    A(f"{MF} {Vr(accV,16)}, v[84:87], v[104:107], {Vr(accV,16)}")
    A(f"""
    v_mul_f32 v{vSum}, {0.25*LOG2E}, v{vSq}
    v_and_b32 v89, 15, v{LN}
    v_lshl_add_u32 v89, v4, 4, v89
    v_lshlrev_b32 v89, 5, v89
    v_bfe_u32 v90, v{LN}, 4, 1
    v_lshl_add_u32 v89, v90, 17, v89
    s_lshl_b32 s38, s{sHP}, 7
    s_add_u32 s38, s38, s{sBLK}
    s_lshl_b32 s39, s38, 10
    s_add_u32 s40, s39, 65536
    s_lshl_b32 s41, s38, 11
    s_add_u32 s41, s41, {KV}
    s_add_u32 s42, s41, 131072
    s_waitcnt lgkmcnt(0)
    """)
    def scale_store(acc, mulf, stores):
        for r in range(16):
            A(f"v_mul_f32 v{acc+r}, v{mulf(r)}, v{acc+r}")
        for r in range(8):
            A(f"v_cvt_pk_bf16_f32 v{acc+r}, v{acc+2*r}, v{acc+2*r+1}")
        for e in range(2):
            vm.issue(stores[e].format(d=Vr(acc + 4 * e), s=S4(WS)), 'qkv')
    scale_store(accK, lambda r: vSq, ["buffer_store_dwordx4 {d}, v1, {s}, s41 offen sc1", "buffer_store_dwordx4 {d}, v1, {s}, s42 offen sc1"])
    scale_store(accV, lambda r: 120 + r, ["buffer_store_dwordx4 {d}, v89, {s}, s41 offen offset:1024 sc1", "buffer_store_dwordx4 {d}, v89, {s}, s41 offen offset:1040 sc1"])
    scale_store(accQ, lambda r: vSum, ["buffer_store_dwordx4 {d}, v1, {s}, s39 offen sc1", "buffer_store_dwordx4 {d}, v1, {s}, s40 offen sc1"])
    prof_mark(A, name='p1epi')
    PR = 140
    A(f"""
    v_bfe_u32 v5, v{LN}, 4, 1
    v_bfe_u32 v6, v{LN}, 2, 2
    v_and_b32 v7, 3, v{LN}
    v_lshl_add_u32 v8, v4, 2, v6
    s_add_u32 s35, s{sMX}, {3*4096}
    """)
    vm.wait('prep')
    A(f"""
    s_cmp_ge_u32 s2, 112
    s_cbranch_scc1 F_ppB
    v_lshlrev_b32 v10, 12, v5
    v_lshl_add_u32 v10, v8, 5, v10
    v_lshl_add_u32 v10, v7, 3, v10
    v_add_u32 v10, s35, v10
    v_mov_b32 v11, 0
    v_mov_b32 v12, 0
    """)
    for ks in range(8):
        for jj in range(2):
            A(f"ds_read_b64_tr_b16 v[{PR+4*ks+2*jj}:{PR+1+4*ks+2*jj}], v10 offset:{512*ks+256*jj}")
    for ks in range(8):
        A(f"s_waitcnt lgkmcnt({14-2*ks})")
        if ks == 4:
            A(f"s_add_u32 s{sPD}, s{sPD}, 4096")
        A(f"buffer_store_dwordx4 {Vr(PR+4*ks)}, v{L16}, {S4(WS)}, s{sPD} offen offset:{(ks&3)*1024} sc1")
        for d in range(4):
            A(f"v_dot2c_f32_bf16 v{11+(d&1)}, s{sONES}, v{PR+4*ks+d}")
    A("v_add_f32 v11, v11, v12")
    halfsum(A, [11], 12)
    A(f"""
    v_lshlrev_b32 v13, 4, v3
    v_add_u32 v13, {PCS}, v13
    s_lshl_b32 s35, s3, 2
    v_add_u32 v14, s35, v13
    ds_write_b32 v14, v11
    s_waitcnt vmcnt(8)
    s_branch F_ppE
    F_ppB:
    v_lshlrev_b32 v10, 5, v5
    v_lshl_add_u32 v10, v8, 6, v10
    v_lshl_add_u32 v10, v7, 3, v10
    v_add_u32 v10, s35, v10
    """)
    for ks in range(4):
        for jj in range(2):
            A(f"ds_read_b64_tr_b16 v[{PR+4*ks+2*jj}:{PR+1+4*ks+2*jj}], v10 offset:{1024*ks+512*jj}")
    for ks in range(4):
        A(f"s_waitcnt lgkmcnt({6-2*ks})")
        A(f"buffer_store_dwordx4 {Vr(PR+4*ks)}, v{L16}, {S4(WS)}, s{sPD} offen offset:{ks*1024} sc1")
    A("s_waitcnt vmcnt(4)")
    A.label("F_ppE")
    A(f"""
    v_cmp_eq_u32 vcc, 1, v{vDBG}
    s_cmp_eq_u64 vcc, -1
    s_cbranch_scc1 F_dbg_ok
    v_mov_b32 v26, 0
    """)
    poll(A, "F_dbg", 26, vDBG, "0", srdb=DS)
    sHEAD, sQB, sQBLK = 54, 55, 56
    A(f"""
    s_lshl_b32 s32, s{sHP}, 4
    s_add_u32 s32, s32, s{sTB}
    s_lshl_b32 s32, s32, 4
    s_add_u32 s32, s32, {F1}
    s_lshl_b32 s{sHEAD}, s{sXCD}, 2
    s_lshr_b32 s31, s{sIDX}, 3
    s_add_u32 s{sHEAD}, s{sHEAD}, s31
    s_and_b32 s{sQB}, s{sIDX}, 7
    s_lshl_b32 s{sQBLK}, s{sQB}, 3
    s_lshl_b32 s31, s3, 1
    s_add_u32 s{sQBLK}, s{sQBLK}, s31
    s_waitcnt lgkmcnt(0)
    s_barrier
    """)
    setflag(A, "F_f1", "s32", 26, 27)
    prof_mark(A, name='f1set')
    A(f"""
    s_cmp_ge_u32 s2, 112
    s_cbranch_scc1 F_ncs
    s_cmp_lg_u32 s3, 1
    s_cbranch_scc1 F_ncs
    ds_read_b128 v[48:51], v13
    s_lshl_b32 s34, s2, 10
    s_add_u32 s34, s34, {CSF}
    s_waitcnt lgkmcnt(0)
    v_add_f32 v48, v48, v49
    v_add_f32 v50, v50, v51
    v_add_f32 v48, v48, v50
    """)
    split3(A, 48, 49, 50, 51)
    pack_c(A, 52, 49, 50, 51, sPERM)
    A(f"buffer_store_dwordx4 v[52:55], v{L16}, {S4(WS)}, s34 offen sc1")
    A("s_nop 1")
    A.label("F_ncs")

    Q = [8, 12]; KB = [16, 20]; VB = [24, 32]; N = [40, 56]; S = [72, 88]; P = [104, 112]; O = [120, 136]
    vKa, vVa = 4, 5
    WO = 152; RX = 216
    vOF = [L16] + list(range(224, 231))
    vL32, vF0, vRX = 231, 232, 236
    sKV, sMK, sQ = 57, 58, 59
    sTT, sCT = 60, 61
    sWo0, sWo1, sW20, sW21, sCS, sRX = 32, 33, 34, 35, 36, 37
    sTB4, sCG = 62, 63
    A(f"""
    v_mov_b32 v6, {ONES}
    v_mov_b32 v7, {ONES}
    v_mul_u32_u24 v16, {TS}, v{LN}
    v_and_b32 v3, 15, v{LN}
    v_lshlrev_b32 v3, 4, v3
    s_lshr_b32 s31, s{sHEAD}, 1
    s_lshl_b32 s31, s31, 8
    s_add_u32 s31, s31, {F1}
    s_lshl_b32 s{sKV}, s{sHEAD}, 17
    s_lshl_b32 s{sMK}, s3, 12
    s_add_u32 s{sKV}, s{sKV}, s{sMK}
    s_add_u32 s{sKV}, s{sKV}, {KV-32}
    s_mul_i32 s{sMK}, s3, {2*TS}
    s_lshl_b32 s{sQ}, s{sHEAD}, 6
    s_add_u32 s{sQ}, s{sQ}, s{sQBLK}
    s_lshl_b32 s{sQ}, s{sQ}, 10
    v_add_u32 v{vL32}, 32, v{L16}
    """)
    for i in range(4):
        A(f"ds_write_b64 v16, v[6:7] offset:{2048+8*i}")
    A(f"""
    v_mov_b32 v{vKa}, v{L16}
    v_and_b32 v17, 15, v{LN}
    v_lshrrev_b32 v18, 5, v{LN}
    v_lshl_add_u32 v17, v18, 4, v17
    v_lshlrev_b32 v17, 5, v17
    v_and_b32 v18, 16, v{LN}
    v_cmp_eq_u32 vcc, 0, v18
    v_mov_b32 v19, 1024
    v_cndmask_b32 v{vVa}, v19, v17, vcc
    v_add_u32 v{vVa}, 1024, v{vVa}
    v_add_u32 v{vKa+2}, {32*TS}, v{vKa}
    v_add_u32 v{vVa+2}, {32*TS}, v{vVa}
    """)
    A.lines = A.lines[:-2]
    for k in range(1, 8):
        A(f"v_add_u32 v{vOF[k]}, {4096*k}, v{L16}")
    poll(A, "F_p1", 3, 20, "s31")
    prof_mark(A, name='f1poll')
    def kvdma(g):
        L = [("s", f"s_add_u32 m0, s{sMK}, {8*g*TS}"),
             ("v", f"buffer_load_dwordx4 v{vL32}, {S4(WS)}, s{sKV} offen sc1 lds", ('kv', g)),
             ("v", f"buffer_load_dwordx4 v{vL32}, {S4(WS)}, s{sKV} offen offset:1024 sc1 lds", ('kv', g)),
             ("v", f"buffer_load_dwordx4 v{L16}, {S4(WS)}, s{sKV} offen offset:{TS} sc1 lds", ('kv', g)),
             ("v", f"buffer_load_dwordx4 v{L16}, {S4(WS)}, s{sKV} offen offset:{TS+1024} sc1 lds", ('kv', g)),
             ("s", f"s_add_u32 s{sKV}, s{sKV}, 16384")]
        return L
    for x in kvdma(0):
        emit(x)
    for q in range(2):
        vm.issue(f"buffer_load_dwordx4 {Vr(Q[q])}, v{L16}, {S4(WS)}, s{sQ} offen offset:{1024*q} sc1", 'q')
    for x in kvdma(1):
        emit(x)
    vKb, vVb = 233 + 4, 233 + 5
    A(f"""
    v_add_u32 v{vKb}, {32*TS}, v{vKa}
    v_add_u32 v{vVb}, {32*TS}, v{vVa}
    s_mov_b32 s{sTT}, s{sHEAD}
    s_mov_b32 s{sCT}, s{sQB}
    s_lshl_b32 s{sTB4}, s{sXCD}, 1
    s_lshr_b32 s31, s{sIDX}, 4
    s_add_u32 s{sTB4}, s{sTB4}, s31
    s_and_b32 s{sCG}, s{sIDX}, 15
    s_and_b32 s38, s3, 1
    s_lshl_b32 s39, s{sCT}, 1
    s_add_u32 s39, s39, s38
    s_xor_b32 s40, s39, 1
    s_lshl_b32 s41, s3, 13
    s_add_u32 s41, s41, {WOF}
    s_lshl_b32 s{sWo0}, s39, 15
    s_add_u32 s{sWo0}, s{sWo0}, s41
    s_lshl_b32 s{sWo1}, s40, 15
    s_add_u32 s{sWo1}, s{sWo1}, s41
    s_mul_i32 s41, s3, {28*1024}
    s_add_u32 s41, s41, {W2F}
    s_mul_i32 s{sW20}, s39, {112*1024}
    s_add_u32 s{sW20}, s{sW20}, s41
    s_mul_i32 s{sW21}, s40, {112*1024}
    s_add_u32 s{sW21}, s{sW21}, s41
    s_mul_i32 s{sCS}, s{sCG}, 7168
    s_add_u32 s{sCS}, s{sCS}, {CSF}
    s_lshr_b32 s38, s3, 1
    s_lshl_b32 s40, s{sTT}, 1
    s_add_u32 s40, s40, s38
    s_lshl_b32 s{sRX}, s40, 15
    s_lshl_b32 s41, s39, 6
    s_add_u32 s{sRX}, s{sRX}, s41
    v_and_b32 v16, 31, v{LN}
    v_lshrrev_b32 v17, 5, v{LN}
    v_lshlrev_b32 v{vRX}, 10, v16
    v_lshl_add_u32 v{vRX}, v17, 4, v{vRX}
    s_lshl_b32 s42, s2, 2
    s_add_u32 s42, s42, {F0}
    """)
    sNT, sBK = 39, 40
    for r in range(8):
        A(f"v_mov_b32 v{P[1]+r}, 0")
        A(f"v_mov_b32 v{VB[1]+r}, 0")
    for q in range(2):
        for r in range(16):
            A(f"v_mov_b32 v{O[q]+r}, 0")
    vm.wait('q', "lgkmcnt(0)")
    A("s_barrier")
    setflag(A, "F_f0", "s42", 6, 7)
    A(f"ds_read_b128 {Vr(KB[0])}, v{vKa}")
    A(f"ds_read_b128 {Vr(KB[1])}, v{vKa} offset:{TS}")
    A(f"ds_read_b128 {Vr(VB[0])}, v{vVa}")
    A(f"ds_read_b128 {Vr(VB[0]+4)}, v{vVa} offset:16")
    A("s_waitcnt lgkmcnt(3)")
    for q in range(2):
        A(f"{MF} {Vr(S[q],16)}, {Vr(KB[0])}, {Vr(Q[q])}, 0")
    for q in range(2):
        s = S[q]
        A(f"v_max3_f32 v{6+q}, v{s}, v{s+1}, v{s+2}")
        for r in range(3, 15, 2):
            A(f"v_max3_f32 v{6+q}, v{6+q}, v{s+r}, v{s+r+1}")
        A(f"v_max_f32 v{6+q}, v{6+q}, v{s+15}")
    halfsum(A, [6, 7], P[0], op="v_max_f32")
    for r in range(16):
        A(f"v_sub_f32 v{N[0]+r}, 0, v6")
    A(f"{MF} {Vr(S[0],16)}, {Vr(KB[0])}, {Vr(Q[0])}, {Vr(N[0],16)}")
    for r in range(16):
        A(f"v_sub_f32 v{N[1]+r}, 0, v7")
    for r in range(12, 16):
        A(f"v_mov_b32 v{S[1]+r}, 0")
    A("s_waitcnt lgkmcnt(0)")
    prof_mark(A, name='p2pro')
    def slots_of(seq):
        lead = []; out = []
        for x in seq:
            if x[0] == "v":
                out.append([x])
            elif out:
                out[-1].append(x)
            else:
                lead.append(x)
        return lead, out
    seq = []
    for g in range(2, 8):
        seq += kvdma(g)
    lead, sl_kv = slots_of(seq)
    for x in lead:
        emit(x)
    pre = []
    for s in range(8):
        for n in range(2):
            pre.append([("v", f"buffer_load_dwordx4 {Vr(WO+8*s+4*n)}, v{vOF[s>>2]}, {S4(WS)}, s{[sWo0,sWo1][n]} offen offset:{(s&3)*1024} sc1", 'wo')])
    for e in range(2):
        pre.append([("v", f"buffer_load_dwordx4 {Vr(RX+4*e)}, v{vRX}, {S4(XS)}, s{sRX} offen offset:{32*e}", 'rx')])
    for s in range(28):
        for n in range(2):
            pre.append([("v", f"buffer_load_dwordx4 {Ar(8*s+4*n)}, v{vOF[s>>2]}, {S4(WS)}, s{[sW20,sW21][n]} offen offset:{(s&3)*1024} sc1", 'w2')])
    for t in range(7):
        pre.append([("v", f"buffer_load_dwordx4 {Ar(224+4*t)}, v{vOF[t>>2]}, {S4(WS)}, s{sCS} offen offset:{(t&3)*1024} sc1", 'cs')])
    TF0 = 16
    sched = {}
    i = 0
    for kt in range(64):
        for sl in range(2):
            if i < len(sl_kv):
                sched[(kt, sl)] = sl_kv[i]; i += 1
            elif i == len(sl_kv):
                sched[(kt, sl)] = [("v", f"buffer_load_dwordx4 {Vr(vF0)}, v{L16}, {S4(WS)}, s43 offen sc1", 'f0')]; i += 1
            elif kt > TF0 and pre:
                sched[(kt, sl)] = pre.pop(0)
    assert not pre, len(pre)
    A(f"s_mov_b32 s43, {F0}")
    def kaddr(kt):
        return (vKa, kt * TS) if kt < 31 else (vKb, (kt - 32) * TS) if kt >= 32 else (vKa, kt * TS)
    def vaddr(kt):
        return (vVa, kt * TS) if kt < 31 else (vVb, (kt - 32) * TS) if kt >= 32 else (vVa, kt * TS)
    assert 31 * TS + 1024 + 16 < 65536
    A(".p2align 3")
    NU = 128
    for u in range(NU):
        kt, q = u >> 1, u & 1
        un = u + 1; ktn, qn = un >> 1, un & 1
        up = u - 1; ktp, qp = up >> 1, up & 1
        s = S[u & 1]; p = P[u & 1]; sn = S[un & 1]; pp = P[up & 1]
        M = [f"{MF} {Vr(sn,16)}, {Vr(KB[ktn&1])}, {Vr(Q[qn])}, {Vr(N[qn],16)}" if un < NU else None,
             f"{MF} {Vr(O[qp],16)}, {Vr(VB[ktp&1])}, {Vr(pp)}, {Vr(O[qp],16)}",
             f"{MF} {Vr(O[qp],16)}, {Vr(VB[ktp&1]+4)}, {Vr(pp+4)}, {Vr(O[qp],16)}"]
        e = lambda i: f"v_exp_f32 v{s+i}, v{s+i}"
        c = lambda i: f"v_cvt_pk_bf16_f32 v{p+i}, v{s+2*i}, v{s+2*i+1}"
        cp = lambda i: f"v_cvt_pk_bf16_f32 v{pp+i}, v{sn+2*i}, v{sn+2*i+1}"
        sh = [[], [], []]
        if q == 1:
            if kt + 1 < 64:
                r, o = vaddr(kt + 1)
                sh[0] = [f"ds_read_b128 {Vr(VB[(kt+1)&1])}, v{r} offset:{o}"]
                sh[1] = [f"ds_read_b128 {Vr(VB[(kt+1)&1]+4)}, v{r} offset:{o+16}"]
            if kt + 2 < 64:
                r, o = kaddr(kt + 2)
                sh[2] = [f"ds_read_b128 {Vr(KB[kt&1])}, v{r} offset:{o}"]
        else:
            sh[0] = sched.get((kt, 0), [])
            sh[1] = sched.get((kt, 1), [])
            sh[2] = ["WAIT"]
        body = [e(0), e(1), cp(6), e(2), e(3), cp(7), c(0), M[0]] + sh[0] + \
               [e(4), e(5), c(1), e(6), e(7), c(2), M[1]] + sh[1] + \
               [e(8), e(9), c(3), e(10), e(11), c(4), M[2]] + sh[2] + \
               [e(12), e(13), c(5), e(14), e(15)]
        for l in body:
            if l is None:
                continue
            if l == "WAIT":
                if kt == 6:
                    vm.wait(('kv', 1), "lgkmcnt(0)"); A("s_barrier")
                elif kt == 14:
                    vm.wait(('kv', 4), "lgkmcnt(0)"); A("s_barrier")
                elif kt == TF0:
                    vm.wait('f0', "lgkmcnt(0)"); A("s_barrier")
                    A(f"""
                    v_and_b32 v{vF0}, v{vF0}, v{vF0+1}
                    v_and_b32 v{vF0+2}, v{vF0+2}, v{vF0+3}
                    v_and_b32 v{vF0}, v{vF0}, v{vF0+2}
                    v_cmp_eq_u32 vcc, 1, v{vF0}
                    s_cmp_eq_u64 vcc, -1
                    s_cbranch_scc0 F_f0slow
                    F_f0back:
                    """)
                else:
                    A("s_waitcnt lgkmcnt(0)")
            else:
                emit(l)
    pp = P[1]
    for i in (6, 7):
        A(f"v_cvt_pk_bf16_f32 v{pp+i}, v{S[1]+2*i}, v{S[1]+2*i+1}")
    A(f"{MF} {Vr(O[1],16)}, {Vr(VB[1])}, {Vr(pp)}, {Vr(O[1],16)}")
    A(f"{MF} {Vr(O[1],16)}, {Vr(VB[1]+4)}, {Vr(pp+4)}, {Vr(O[1],16)}")
    prof_mark(A, name='p2loop')
    A("s_mov_b32 s44, 0x7e800000")
    for q in range(2):
        o = O[q]
        A(f"v_max3_f32 v6, |v{o}|, |v{o+1}|, |v{o+2}|" if q == 0 else f"v_max3_f32 v6, v6, |v{o}|, |v{o+1}|")
        rest = list(range(3, 8)) if q == 0 else list(range(2, 8))
        while rest:
            if len(rest) >= 2:
                A(f"v_max3_f32 v6, v6, |v{o+rest[0]}|, |v{o+rest[1]}|"); rest = rest[2:]
            else:
                A(f"v_max_f32 v6, v6, |v{o+rest[0]}|"); rest = rest[1:]
    A(f"""
    v_max_f32 v7, v{O[0]+8}, v{O[1]+8}
    v_add_f32 v{P[0]}, v{O[0]+8}, v{O[1]+8}
    v_cmp_gt_f32 vcc, 0x53800000, v7
    v_cmp_o_f32 s[46:47], v{P[0]}, v{P[0]}
    v_cmp_gt_f32 s[48:49], s44, v6
    s_and_b64 s[46:47], s[46:47], vcc
    s_and_b64 s[46:47], s[46:47], s[48:49]
    s_cmp_eq_u64 s[46:47], -1
    s_cbranch_scc0 F_fallback
    F_attn_done:
    s_lshl_b32 s38, s{sQBLK}, 5
    s_add_u32 s38, s38, s{sHEAD}
    s_lshl_b32 s38, s38, 10
    s_add_u32 s38, s38, {OF}
    s_add_u32 s41, s38, 32768
    v_rcp_f32 v6, v{O[0]+8}
    v_rcp_f32 v7, v{O[1]+8}
    """)
    for q in range(2):
        o = O[q]
        for r in range(8):
            A(f"v_mul_f32 v{o+r}, v{6+q}, v{o+r}")
        for r in range(4):
            A(f"v_cvt_pk_bf16_f32 v{o+r}, v{o+2*r}, v{o+2*r+1}")
        vm.issue(f"buffer_store_dwordx4 {Vr(o)}, v{L16}, {S4(WS)}, s{[38,41][q]} offen sc1", 'ost')

    RG = 10
    sWk, sW4, sWt = 44, 45, 46
    vT = [L16, 233, 234, 235]
    A(f"""
    s_mul_i32 s{sWt}, s{sCG}, {7*32768}
    s_add_u32 s{sWt}, s{sWt}, {W13F}
    s_lshl_b32 s31, s3, 10
    s_add_u32 s{sWk}, s{sWt}, s31
    s_lshl_b32 s{sW4}, s3, 12
    s_add_u32 s{sWt}, s{sWt}, s{sW4}
    s_lshl_b32 s47, s{sQB}, 5
    s_add_u32 s47, s47, s{sHEAD}
    s_lshl_b32 s47, s47, 4
    s_add_u32 s47, s47, {F2}
    s_lshr_b32 s48, s{sTT}, 2
    s_lshl_b32 s48, s48, 9
    s_lshl_b32 s31, s3, 7
    s_add_u32 s48, s48, s31
    s_add_u32 s48, s48, {F2}
    s_lshl_b32 s49, s3, 13
    s_add_u32 s49, s49, {OF}
    s_xor_b32 s50, s{sBK}, 1
    s_lshl_b32 s50, s50, 15
    s_add_u32 s50, s50, s49
    s_lshl_b32 s31, s{sBK}, 15
    s_add_u32 s49, s49, s31
    v_and_b32 v3, 7, v{LN}
    v_lshlrev_b32 v3, 4, v3
    """)
    for i in range(1, 4):
        A(f"v_add_u32 v{vT[i]}, {i*(32768-1024)}, v{L16}")
    def dma4(g):
        L = [("s", f"s_add_u32 m0, s{sW4}, {(g % RG)*16384}")]
        if g < 8:
            L.append(("s", f"s_add_u32 s51, s{sWk}, {g*4096}"))
            for i in range(4):
                L.append(("v", f"buffer_load_dwordx4 v{vT[i]}, {S4(WS)}, s51 offen offset:{i*1024} sc1 lds", ('g', g)))
        else:
            t = 4 + (g - 8) // 2
            L.append(("s", f"s_add_u32 s51, s{sWt}, {t*32768 + ((g-8)&1)*16384}"))
            for i in range(4):
                L.append(("v", f"buffer_load_dwordx4 v{L16}, {S4(WS)}, s51 offen offset:{i*1024} sc1 lds", ('g', g)))
        return L
    A("s_barrier")
    G1 = ENV("P3G1", 3)
    for g in range(G1):
        for x in dma4(g):
            emit(x)
    vm.wait('ost')
    A("s_barrier")
    setflag(A, "F_f2", "s47", 6, 7)
    prof_mark(A, name='f2set')
    poll(A, "F_p2", 3, 6, "s48")
    prof_mark(A, name="f2poll")
    vm.done = len(vm.ops)
    OB = 8; AC3 = 72
    for s in range(8):
        for b in range(2):
            vm.issue(f"buffer_load_dwordx4 {Vr(OB+8*s+4*b)}, v{vOF[s>>2]}, {S4(WS)}, s{49+b} offen offset:{(s&3)*1024} sc1", ('o', s))
    RED = 7 * 16384
    for j in range(1, 4):
        A(f"s_xor_b32 s31, s3, {j}")
        A(f"s_mul_i32 s31, s31, 12288")
        A(f"s_add_u32 s31, s31, {RED}")
        A(f"v_add_u32 v{136+j}, s31, v{L16}")
    A(f"""
    s_mul_i32 s31, s3, 12288
    s_add_u32 s31, s31, {RED}
    v_add_u32 v136, s31, v{L16}
    s_lshl_b32 s42, s{sBK}, 5
    s_lshl_b32 s43, s{sNT}, 1
    s_add_u32 s42, s42, s43
    s_lshl_b32 s42, s42, 10
    s_add_u32 s42, s42, {HF}
    """)
    sHF = 42
    for p_ in (0, 1, 4, 5):
        A(f"v_permlane32_swap_b32 v{RX+p_}, v{RX+p_+2}")
    acc = lambda j: AC3 + 16 * j
    fillq = []
    for g in range(G1, 7):
        fillq += dma4(g)
    for s in range(8):
        vm.wait(('o', s))
        order = [1, 2, 3, 0] if s == 7 else [0, 1, 2, 3]
        for j in order:
            n, b = j & 1, j >> 1
            C = "0" if s == 0 else Vr(acc(j), 16)
            A(f"{MF} {Vr(acc(j),16)}, {Vr(WO+8*s+4*n)}, {Vr(OB+8*s+4*b)}, {C}")
            k = 0
            while fillq and (k == 0 or fillq[0][0] == "s"):
                x = fillq.pop(0); emit(x)
                if x[0] == "v":
                    k += 1
    for x in fillq:
        emit(x)
    prof_mark(A, name="p3mm")
    def reduce(acc, va, resid_fn):
        for j in range(1, 4):
            for r in range(4):
                A(f"ds_write_b128 v{va+j}, {Vr(acc(j)+4*r)} offset:{(j-1)*4096+r*1024}")
        resid_fn()
        A("s_waitcnt lgkmcnt(0)")
        A("s_barrier")
        for j in range(1, 4):
            for r in range(4):
                A(f"ds_read_b128 {Vr(acc(j)+4*r)}, v{va} offset:{(j-1)*4096+r*1024}")
        for j in range(1, 4):
            for r in range(4):
                A(f"s_waitcnt lgkmcnt({11-((j-1)*4+r)})")
                for e_ in range(4):
                    A(f"v_add_f32 v{acc(0)+4*r+e_}, v{acc(0)+4*r+e_}, v{acc(j)+4*r+e_}")
    def resid(acc, RES, U):
        for d in range(8):
            A(f"v_lshlrev_b32 v{U+2*d}, 16, v{RES+d}")
            A(f"v_and_b32 v{U+2*d+1}, 0xffff0000, v{RES+d}")
        for r in range(16):
            A(f"v_add_f32 v{acc(0)+r}, v{acc(0)+r}, v{U+r}")
    reduce(acc, 136, lambda: resid(acc, RX, 8))
    a0 = acc(0); PK = acc(1)
    for d in range(8):
        A(f"v_cvt_pk_bf16_f32 v{PK+d}, v{a0+2*d}, v{a0+2*d+1}")
    vm.issue(f"buffer_store_dwordx4 {Vr(PK)}, v{L16}, {S4(WS)}, s{sHF} offen sc1", 'hst')
    vm.issue(f"buffer_store_dwordx4 {Vr(PK+4)}, v{L16}, {S4(WS)}, s{sHF} offen offset:1024 sc1", 'hst')
    A(f"v_add_f32 v8, v{a0}, v{a0+1}")
    A(f"v_mul_f32 v9, v{a0}, v{a0}")
    A(f"v_add_f32 v10, v{a0+2}, v{a0+3}")
    A(f"v_mul_f32 v11, v{a0+1}, v{a0+1}")
    for r in range(2, 16):
        A(f"v_fma_f32 v{9 + 2*(r&1)}, v{a0+r}, v{a0+r}, v{9 + 2*(r&1)}")
        if r >= 4:
            A(f"v_add_f32 v{8 + 2*(r&1)}, v{8 + 2*(r&1)}, v{a0+r}")
    A(f"""
    v_add_f32 v8, v8, v10
    v_add_f32 v9, v9, v11
    v_and_b32 v5, 31, v{LN}
    v_lshrrev_b32 v6, 5, v{LN}
    v_lshlrev_b32 v12, 7, v5
    v_lshl_add_u32 v13, v6, 6, v12
    v_lshl_add_u32 v12, v6, 2, v12
    v_permlane32_swap_b32 v8, v9
    s_lshl_b32 s47, s{sBK}, 12
    s_lshl_b32 s48, s{sNT}, 3
    s_add_u32 s47, s47, s48
    s_add_u32 s47, s47, {ST}
    v_add_f32 v8, v8, v9
    """)
    vm.issue(f"buffer_store_dword v8, v12, {S4(WS)}, s47 offen sc1", 'hst')
    sB4, sH, sST, sG = 47, 48, 49, 50
    A(f"""
    s_lshl_b32 s31, s{sTT}, 3
    s_add_u32 s31, s31, s{sCT}
    s_lshl_b32 s31, s31, 4
    s_add_u32 s31, s31, {F3}
    s_lshl_b32 s{sB4}, s{sTB4}, 2
    s_add_u32 s{sB4}, s{sB4}, s3
    s_lshl_b32 s{sH}, s{sB4}, 15
    s_add_u32 s{sH}, s{sH}, {HF}
    s_lshl_b32 s{sST}, s{sB4}, 12
    s_add_u32 s{sST}, s{sST}, {ST}
    s_mul_i32 s{sG}, s{sB4}, {112*1024}
    s_mul_i32 s43, s{sCG}, 7168
    s_add_u32 s{sG}, s{sG}, s43
    s_add_u32 s{sG}, s{sG}, {GF}
    s_lshr_b32 s43, s{sB4}, 1
    s_lshl_b32 s43, s43, 7
    s_add_u32 s43, s43, {F3}
    v_add_u32 v10, 4096, v{L16}
    v_add_u32 v11, 65536, v{L16}
    v_add_u32 v14, 131072, v{L16}
    v_mov_b32 v7, v{vT[1]}
    v_mov_b32 v8, v{vT[2]}
    v_mov_b32 v9, v{vT[3]}
    """)
    vT[1:] = [7, 8, 9]
    vm.wait('hst')
    A("s_barrier")
    setflag(A, "F_f3", "s31", 4, 5)
    prof_mark(A, name='f3set')
    poll(A, "F_p3", 3, 4, "s43")
    prof_mark(A, name="f3poll")
    vm.done = len(vm.ops)
    H = 128
    ACC = [16 + 16 * i for i in range(5)]
    NWB = 6
    WB4 = [96 + 4 * i for i in range(NWB)]
    MU = 120
    vRA, vRB = 124, 125
    TMP = [126, 127]
    vH = 6
    def hload(ks):
        L = []
        if ks and ks % 8 == 0:
            L.append(("s", f"s_add_u32 s{sH}, s{sH}, 8192"))
        L.append(("v", f"buffer_load_dwordx4 {Vr(H+4*ks)}, v{[L16,10][(ks>>2)&1]}, {S4(WS)}, s{sH} offen offset:{(ks&3)*1024} sc1", ('h', ks)))
        return L
    HPRE = ENV("P4HPRE", 12)
    for ks in range(HPRE):
        for x in hload(ks):
            emit(x)
    S4r = ACC[4]
    fill = []
    for ks in range(HPRE, 32):
        fill += hload(ks)
    for i in range(4):
        fill.append(("v", f"buffer_load_dwordx4 {Vr(S4r+4*i)}, v13, {S4(WS)}, s{sST} offen offset:{16*i} sc1", 'st'))
    for g in range(7, 10):
        fill += dma4(g)
    st = []
    R = S4r
    st += [f"v_add_f32 v{R+2*i}, v{R+2*i}, v{R+2*i+8}" for i in range(4)]
    st += [f"v_add_f32 v{R+2*i+1}, v{R+2*i+1}, v{R+2*i+9}" for i in range(4)]
    st += [f"v_add_f32 v{R}, v{R}, v{R+4}", f"v_add_f32 v{R+1}, v{R+1}, v{R+5}",
           f"v_add_f32 v{R+2}, v{R+2}, v{R+6}", f"v_add_f32 v{R+3}, v{R+3}, v{R+7}",
           f"v_add_f32 v{R}, v{R}, v{R+2}", f"v_add_f32 v{R+1}, v{R+1}, v{R+3}",
           f"v_mov_b32 v{R+2}, v{R}", f"v_mov_b32 v{R+3}, v{R+1}",
           f"v_cmp_eq_u32 vcc, 0, v{vH}", "s_nop 0",
           f"v_permlane32_swap_b32 v{R+2}, v{R}", f"v_permlane32_swap_b32 v{R+3}, v{R+1}",
           f"v_add_f32 v{R}, v{R}, v{R+2}", f"v_add_f32 v{R+1}, v{R+1}, v{R+3}",
           f"v_mul_f32 v{R}, {1.0/512}, v{R}", f"v_mul_f32 v{R+1}, {1.0/512}, v{R+1}",
           f"v_fma_f32 v{R+1}, -v{R}, v{R}, v{R+1}", f"v_max_f32 v{R+1}, 0, v{R+1}",
           f"v_add_f32 v{vRB}, 0x3727c5ac, v{R+1}", f"v_rsq_f32 v{vRA}, v{vRB}",
           f"v_cndmask_b32 v{R}, 0, v{R}, vcc", f"v_sub_f32 v{R}, 0, v{R}",
           f"v_mul_f32 v{vRA}, {-LOG2E}, v{vRA}",
           f"v_and_b32 v{R+4}, 0xffff0000, v{R}", f"v_sub_f32 v{R+6}, v{R}, v{R+4}",
           f"v_and_b32 v{R+5}, 0xffff0000, v{R+6}", f"v_sub_f32 v{R+6}, v{R+6}, v{R+5}",
           f"v_perm_b32 v{MU}, v{R+5}, v{R+4}, s{sPERM}", f"v_perm_b32 v{MU+1}, v{R+6}, v{R+4}, s{sPERM}",
           f"v_perm_b32 v{MU+2}, v{R+4}, v{R+5}, s{sPERM}", f"v_mov_b32 v{MU+3}, 0"]
    def epi(t, a):
        L = []
        for j in range(0, 8, 2):
            t0, t1 = TMP
            L += [f"v_mul_f32 v{t0}, v{vRA}, v{a+j}", f"v_mul_f32 v{t1}, v{vRA}, v{a+j+1}",
                  f"v_exp_f32 v{t0}, v{t0}", f"v_mul_f32 v{a+j}, v{a+j}, v{a+8+j}",
                  f"v_exp_f32 v{t1}, v{t1}", f"v_mul_f32 v{a+j+1}, v{a+j+1}, v{a+8+j+1}",
                  f"v_fma_f32 v{t0}, v{t0}, v{vRB}, v{vRB}", f"v_fma_f32 v{t1}, v{t1}, v{vRB}, v{vRB}",
                  f"v_rcp_f32 v{t0}, v{t0}", f"v_rcp_f32 v{t1}, v{t1}",
                  f"v_mul_f32 v{a+j}, v{a+j}, v{t0}", f"v_mul_f32 v{a+j+1}, v{a+j+1}, v{t1}",
                  f"v_cvt_pk_bf16_f32 v{a+8+j//2}, v{a+j}, v{a+j+1}"]
        L.append(("v", f"buffer_store_dwordx4 {Vr(a+8)}, v{L16 if t < 4 else 10}, {S4(WS)}, s{sG} offen offset:{(t&3)*1024} sc1", ('gst', t)))
        return L
    slot = {0: 0, 1: 1, 2: 2, 3: 3, 4: 4, 5: 0, 6: 1}
    order = [(t, ks) for ks in range(32) for t in range(4)] + [(t, ks) for t in range(4, 7) for ks in range(32)]
    NF = len(order)
    seq = []
    for f, (t, ks) in enumerate(order):
        seq.append(('w', f, t, ks))
        if ks == 31:
            seq.append(('mu', None, t, None))
    def rd(f):
        o = (f % (RG * 16)) * 1024
        return f"ds_read_b128 {Vr(WB4[f % NWB])}, v{[L16, 11, 14][o >> 16]} offset:{o & 65535}"
    AH = NWB - 1
    for f in range(AH):
        A(rd(f))
    BUD = ENV("P4BUD", 20)
    for idx, (kind, f, t, ks) in enumerate(seq):
        a = ACC[slot[t]]
        if kind == 'w':
            fr = f + AH
            if fr == 7 * 16:
                vm.wait(('g', 9))
                A("s_barrier")
                pre_ = []
                for g in range(10, 14):
                    pre_ += dma4(g)
                fill = pre_ + fill
            if fr == 10 * 16:
                vm.wait(('g', 13))
                A("s_barrier")
            if f < 128 and t == 0:
                vm.wait(('h', ks))
            if f % 2 == 0:
                nout = min(f + AH, NF) - 1 - min(f + 1, NF - 1)
                A(f"s_waitcnt lgkmcnt({nout})")
            C = "0" if ks == 0 else Vr(a, 16)
            A(f"{MF} {Vr(a,16)}, {Vr(WB4[f % NWB])}, {Vr(H+4*ks)}, {C}")
            if fr < NF:
                A(rd(fr))
            if f in (63, 127):
                prof_mark(A, name=f"p4_{f}")
            if f == 60:
                fill.append(("w", 'st'))
                fill += st
        else:
            A(f"{MF} {Vr(a,16)}, {Ar(224+4*t)}, {Vr(MU)}, {Vr(a,16)}")
            fill.append(("delay", idx + 2))
            fill += epi(t, a)
        budget = BUD
        while fill and budget > 0:
            x = fill[0]
            if isinstance(x, tuple) and x[0] == "delay":
                if idx < x[1]:
                    break
                fill.pop(0); continue
            if isinstance(x, tuple) and x[0] == "w":
                vm.wait(x[1]); fill.pop(0); continue
            cost = 4
            if isinstance(x, str) and x[:5] in ("v_exp", "v_rcp", "v_rsq", "v_per"):
                cost = 8
            if isinstance(x, tuple) and x[0] == "v":
                cost = 12
            if isinstance(x, tuple) and x[0] == "s":
                cost = 2
            if cost > budget and budget < BUD:
                break
            budget -= cost
            fill.pop(0)
            emit(x)
        if idx + 1 < len(seq) and seq[idx + 1][0] == 'w' and seq[idx + 1][3] == 0 and seq[idx + 1][2] >= 4:
            tn = seq[idx + 1][2]
            if tn >= 5:
                assert not any(isinstance(x, tuple) and x[0] == 'v' and x[2] == ('gst', tn - 5) for x in fill), "acc slot not free"
            else:
                assert not any(isinstance(x, str) and x == st[-1] for x in fill), "stats not done"
    prof_mark(A, name='p4loop')
    for x in fill:
        if not (isinstance(x, tuple) and x[0] in ("delay", "w")):
            emit(x)
    sG0, sG1 = 44, 45
    A(f"""
    s_lshl_b32 s31, s{sTB4}, 4
    s_add_u32 s31, s31, s{sCG}
    s_lshl_b32 s31, s31, 4
    s_add_u32 s31, s31, {F4}
    s_lshr_b32 s43, s{sTT}, 1
    s_lshl_b32 s43, s43, 8
    s_lshl_b32 s46, s3, 6
    s_add_u32 s43, s43, s46
    s_add_u32 s43, s43, {F4}
    s_mul_i32 s46, s3, {28*1024}
    s_add_u32 s46, s46, {GF}
    s_mul_i32 s{sG0}, s{sBK}, {112*1024}
    s_add_u32 s{sG0}, s{sG0}, s46
    s_xor_b32 s47, s{sBK}, 1
    s_mul_i32 s{sG1}, s47, {112*1024}
    s_add_u32 s{sG1}, s{sG1}, s46
    v_and_b32 v3, 3, v{LN}
    v_lshlrev_b32 v3, 4, v3
    v_and_b32 v5, 31, v{LN}
    v_lshlrev_b32 v7, 10, v5
    v_lshl_add_u32 v7, v6, 4, v7
    """)
    RES = 248
    vm.issue(f"buffer_load_dwordx4 {Vr(RES)}, v{L16}, {S4(WS)}, s{sHF} offen sc1", 'res')
    vm.issue(f"buffer_load_dwordx4 {Vr(RES+4)}, v{L16}, {S4(WS)}, s{sHF} offen offset:1024 sc1", 'res')
    for j in range(1, 4):
        A(f"s_xor_b32 s46, s3, {j}")
        A(f"s_mul_i32 s46, s46, 12288")
        A(f"v_add_u32 v{12+j}, s46, v{L16}")
    A("s_mul_i32 s46, s3, 12288")
    A(f"v_add_u32 v12, s46, v{L16}")
    vm.wait(('gst', 6))
    A("s_barrier")
    setflag(A, "F_f4", "s31", 4, 5)
    prof_mark(A, name='f4set')
    poll(A, "F_p4", 3, 4, "s43")
    prof_mark(A, name="f4poll")
    vm.done = len(vm.ops)
    NB = 21
    AC5 = 16
    GB = 80
    acc5 = lambda j: AC5 + 16 * j
    gb = lambda s, b: GB + 8 * (s % NB) + 4 * b
    assert GB + 8 * NB <= RES
    def gload(s):
        if s and s % 8 == 0:
            A(f"s_add_u32 s{sG0}, s{sG0}, 8192")
            A(f"s_add_u32 s{sG1}, s{sG1}, 8192")
        for b in range(2):
            vm.issue(f"buffer_load_dwordx4 {Vr(gb(s,b))}, v{[L16,10][(s>>2)&1]}, {S4(WS)}, s{[sG0,sG1][b]} offen offset:{(s&3)*1024} sc1", ('gl', s))
    GPRE = ENV("P5PRE", 8)
    nl = 0
    for s in range(GPRE):
        gload(s); nl += 1
    for s in range(28):
        vm.wait(('gl', s))
        order = [1, 2, 3, 0] if s == 27 else [0, 1, 2, 3]
        for jj, j in enumerate(order):
            n, b = j & 1, j >> 1
            C = "0" if s == 0 else Vr(acc5(j), 16)
            A(f"{MF} {Vr(acc5(j),16)}, {Ar(8*s+4*n)}, {Vr(gb(s,b))}, {C}")
            if jj in (0, 2) and nl < 28 and nl < s + NB:
                gload(nl); nl += 1
    prof_mark(A, name='p5loop')
    reduce(acc5, 12, lambda: resid(acc5, RES, GB))
    a0 = acc5(0); PK = acc5(1)
    for d in range(8):
        A(f"v_cvt_pk_bf16_f32 v{PK+d}, v{a0+2*d}, v{a0+2*d+1}")
    for p_ in (0, 1, 4, 5):
        A(f"v_permlane32_swap_b32 v{PK+p_}, v{PK+p_+2}")
    A(f"buffer_store_dwordx4 {Vr(PK)}, v7, {S4(OS)}, s{sRX} offen")
    A(f"buffer_store_dwordx4 {Vr(PK+4)}, v7, {S4(OS)}, s{sRX} offen offset:32")
    prof_end(A, 0, 4)
    A.label("F_exit")
    A("s_endpgm")
    A.label("F_f0slow")
    A(f"""
    buffer_load_dwordx4 {Vr(vF0)}, v{L16}, {S4(WS)}, s43 offen sc1
    s_waitcnt vmcnt(0)
    v_and_b32 v{vF0}, v{vF0}, v{vF0+1}
    v_and_b32 v{vF0+2}, v{vF0+2}, v{vF0+3}
    v_and_b32 v{vF0}, v{vF0}, v{vF0+2}
    v_cmp_eq_u32 vcc, 1, v{vF0}
    s_cmp_eq_u64 vcc, -1
    s_cbranch_scc1 F_f0back
    s_cmp_eq_u32 s{sTO}, 0
    s_cbranch_scc1 F_f0back
    s_sub_u32 s{sTO}, s{sTO}, 1
    s_sleep 1
    s_branch F_f0slow
    """)
    A.label("F_fallback")
    A(f"""
    v_mov_b32 v6, 0xff800000
    v_mov_b32 v7, 0xff800000
    v_mov_b32 v{P[0]}, v{vKa}
    s_mov_b32 s31, 0
    F_maxloop:
    ds_read_b128 {Vr(KB[0])}, v{P[0]}
    v_add_u32 v{P[0]}, {TS}, v{P[0]}
    s_waitcnt lgkmcnt(0)
    """)
    for q in range(2):
        A(f"{MF} {Vr(S[q],16)}, {Vr(KB[0])}, {Vr(Q[q])}, 0")
    for q in range(2):
        for r in range(0, 16, 2):
            A(f"v_max3_f32 v{6+q}, v{6+q}, v{S[q]+r}, v{S[q]+r+1}")
    A("""
    s_add_u32 s31, s31, 1
    s_cmp_lt_u32 s31, 64
    s_cbranch_scc1 F_maxloop
    """)
    halfsum(A, [6, 7], P[0], op="v_max_f32")
    for q in range(2):
        for r in range(16):
            A(f"v_sub_f32 v{N[q]+r}, 0, v{6+q}")
            A(f"v_mov_b32 v{O[q]+r}, 0")
    A(f"""
    v_mov_b32 v6, v{vKa}
    v_mov_b32 v7, v{vVa}
    s_mov_b32 s31, 0
    F_fbloop:
    ds_read_b128 {Vr(KB[0])}, v6
    ds_read_b128 {Vr(VB[0])}, v7
    ds_read_b128 {Vr(VB[0]+4)}, v7 offset:16
    v_add_u32 v6, {TS}, v6
    v_add_u32 v7, {TS}, v7
    s_waitcnt lgkmcnt(0)
    """)
    for q in range(2):
        A(f"{MF} {Vr(S[q],16)}, {Vr(KB[0])}, {Vr(Q[q])}, {Vr(N[q],16)}")
    for q in range(2):
        for r in range(16):
            A(f"v_exp_f32 v{S[q]+r}, v{S[q]+r}")
        for r in range(8):
            A(f"v_cvt_pk_bf16_f32 v{P[q]+r}, v{S[q]+2*r}, v{S[q]+2*r+1}")
        A(f"{MF} {Vr(O[q],16)}, {Vr(VB[0])}, {Vr(P[q])}, {Vr(O[q],16)}")
        A(f"{MF} {Vr(O[q],16)}, {Vr(VB[0]+4)}, {Vr(P[q]+4)}, {Vr(O[q],16)}")
    A("""
    s_add_u32 s31, s31, 1
    s_cmp_lt_u32 s31, 64
    s_nop 7
    s_nop 3
    s_cbranch_scc1 F_fbloop
    s_branch F_attn_done
    """)
    return ("fused_kernel", A.finish("fused"), 256, 256, 256, 163840)

NAME = "sequential_preLN__softmax_full_mha__glu_gated_swiglu__prompt"
def build1(k, path, plain):
    from gen import HEADER
    name, body, vg, ag, blk, lds = k
    s = HEADER
    if plain:
        name = NAME + "_kernel"
        s += f"; @launch grid=(256,1,1) block=({blk},1,1) lds={lds}\n"
    else:
        s += f"; @launch kernel={name} grid=(256,1,1) block=({blk},1,1) lds={lds}\n"
    s += '.amdgcn_target "amdgcn-amd-amdhsa--gfx950"\n'
    s += kernel_text(name, body, vg, ag)
    open(path, 'w').write(s)

if __name__ == '__main__':
    k = fused()
    if len(sys.argv) > 1:
        build1(k, sys.argv[1], False)
    else:
        build1(k, f'cdna_kernels/{NAME}.s', True)
        build1(k, 'cur.s', False)
```
